```python
import torch

def _softmax(x, axis=-1):
    return torch.softmax(x, dim=axis)
def _gelu(x):
    return torch.nn.functional.gelu(x, approximate="tanh")
def _silu(x):
    return torch.nn.functional.silu(x)
def _sigmoid(x):
    return torch.sigmoid(x)
def _layernorm(x, axis=-1, eps=1e-5):
    m = x.mean(dim=axis, keepdim=True)
    v = x.var(dim=axis, keepdim=True, unbiased=False)
    return (x - m) / torch.sqrt(v + eps)
def _scatter_add(tgt, idx, src, axis=0):
    return tgt.clone().index_add_(axis, idx, src)
def _segment_sum(src, seg, n):
    out = torch.zeros((n,) + src.shape[1:], dtype=src.dtype)
    return out.index_add_(0, seg, src)
def _pad(x, pw):
    flat = tuple(v for pair in reversed(pw) for v in pair)
    return torch.nn.functional.pad(x, flat)

kernel_name = 'standalone__mha_block_cached__near_ridge'

def setup_inputs():

    _w = (lambda a: (lambda t: t.to(torch.bfloat16) if t.is_floating_point() else t)(torch.as_tensor(a)))
    B, Sq, D = 8, 128, 640
    H, Sk, Dh = 32, 1024, 128
    return {
        "x": _w((lambda *s: torch.randn(*s, dtype=torch.bfloat16) * 0.8)(B, Sq, D)),
        "k_cache": _w((lambda *s: torch.randn(*s, dtype=torch.bfloat16) * 0.8)(B, H, Sk, Dh)),
        "v_cache": _w((lambda *s: torch.randn(*s, dtype=torch.bfloat16) * 0.05)(B, H, Sk, Dh)),
        "wq": _w((lambda *s: torch.randn(*s, dtype=torch.bfloat16) * 0.8)(D, H * Dh) * (D ** -0.5)),
        "wo": _w((lambda *s: torch.randn(*s, dtype=torch.bfloat16) * 0.05)(H * Dh, D) * ((H * Dh) ** -0.5)),
    }

def reference(x, k_cache, v_cache, wq, wo):
    B, Sq, D = x.shape
    H, Dh = 32, 128
    q = (lambda x, *d: x.permute(*d))((x @ wq).reshape(B, Sq, H, Dh), 0, 2, 1, 3)
    scores = torch.einsum("bhqd,bhkd->bhqk", q, k_cache) * (Dh ** -0.5)
    p = _softmax(scores, axis=-1)
    o = torch.einsum("bhqk,bhkd->bhqd", p, v_cache)
    return (lambda x, *d: x.permute(*d))(o, 0, 2, 1, 3).reshape(B, Sq, H * Dh) @ wo
```

```python
import sys, struct, math

HEADER = """; Kernarg layout for this problem (64 bytes, ptrs only, base s[0:1]):
"""

def f32bits(x):
    return struct.unpack("<I", struct.pack("<f", x))[0]


class Asm:
    def __init__(self):
        self.lines = []
        self.vq = []

    def e(self, s):
        self.lines.append("    " + s)

    def label(self, s):
        self.lines.append(s + ":")

    def c(self, s):
        self.lines.append("    ; " + s)

    def vm(self, s, tag):
        self.e(s)
        self.vq.append(tag)

    def wait_vm(self, tags):
        last = -1
        for i, t in enumerate(self.vq):
            if t in tags:
                last = i
        if last < 0:
            return
        n = len(self.vq) - 1 - last
        assert n <= 63
        self.e(f"s_waitcnt vmcnt({n})")
        self.vq = self.vq[last + 1:]

    def text(self):
        return "\n".join(self.lines) + "\n"


def vr(a, n):
    return f"v[{a}:{a+n-1}]"


def mfma_pipeline(a, items, bufs, look, between=None):
    n = len(items)
    nb = len(bufs)
    assert nb >= look + 1

    def issue(i):
        b = bufs[i % nb]
        for fmt, off, nr in items[i][0]:
            a.e(fmt.format(d=vr(b + off, nr)))

    for i in range(min(look, n)):
        issue(i)
    for i in range(n):
        pend = sum(len(items[j][0]) for j in range(i + 1, min(i + look, n)))
        assert pend <= 15
        a.e(f"s_waitcnt lgkmcnt({pend})")
        a.e(items[i][1].format(a=vr(bufs[i % nb], 4)))
        if i + look < n:
            issue(i + look)
        if between is not None:
            between(i)


def gen_attn(a, opt):
    NT = " nt" if opt.get("nt", True) else ""
    SCALE = (128 ** -0.5) * math.log2(math.e)
    vLANE = 1
    vKD = [2, 3, 4, 5]
    vVD = 6
    vWD = 7
    vXO = 8
    vKB = 9
    vVB = 10
    vWB = 11
    vKA = list(range(12, 20))
    vVA = list(range(20, 24))
    vM, vL, vAL, vMC = 24, 25, 26, 27
    vT = [28, 29, 30, 31]
    O = 32
    S = 96
    P = 128
    Q = 144
    X = 96
    BUF = [176 + 4 * i for i in range(16)]
    vT2 = list(range(240, 256))

    a.label("attn_kernel")
    a.e("s_cmp_ge_u32 s2, 256")
    a.e("s_cbranch_scc1 L_attn_end")
    a.e("s_load_dwordx8 s[4:11], s[0:1], 0")
    a.e("s_load_dwordx8 s[12:19], s[0:1], 32")
    a.e(f"v_and_b32 v{vLANE}, 63, v0")
    a.e("v_lshrrev_b32 v28, 6, v0")
    a.e("s_nop 0")
    a.e("v_readfirstlane_b32 s40, v28")
    a.e("s_and_b32 s41, s2, 31")
    a.e("s_lshr_b32 s42, s2, 5")
    a.e("s_lshl_b32 s43, s2, 18")
    a.e(f"s_mov_b32 s49, {f32bits(SCALE):#x}")
    a.e("s_nop 1")
    a.e("s_lshl_b32 s50, s40, 12")
    a.e(f"v_lshrrev_b32 v28, 4, v{vLANE}")
    a.e(f"v_and_b32 v29, 15, v{vLANE}")
    a.e(f"v_lshrrev_b32 v30, 5, v{vLANE}")
    a.e(f"v_and_b32 v31, 31, v{vLANE}")
    a.e("s_lshl_b32 s51, s40, 4")
    a.e("v_add_u32 v240, s51, v28")
    a.e("v_xor_b32 v241, v29, v28")
    a.e("v_lshlrev_b32 v241, 4, v241")
    a.e(f"v_lshl_add_u32 v{vKD[0]}, v240, 8, v241")
    for j in range(1, 4):
        a.e(f"v_xor_b32 v{vKD[j]}, {j << 6}, v{vKD[0]}")
    a.e("v_lshlrev_b32 v241, 2, v28")
    a.e("v_xor_b32 v241, v29, v241")
    a.e("v_lshlrev_b32 v241, 4, v241")
    a.e(f"v_lshl_add_u32 v{vVD}, v240, 8, v241")
    a.e(f"v_lshl_add_u32 v{vWD}, v240, 13, v241")
    a.e("s_lshl_b32 s51, s42, 7")
    a.e("s_lshl_b32 s52, s40, 5")
    a.e("s_add_u32 s51, s51, s52")
    a.e("v_add_u32 v241, s51, v31")
    a.e("s_movk_i32 s52, 1280")
    a.e("v_mul_lo_u32 v241, v241, s52")
    a.e(f"v_lshl_add_u32 v{vXO}, v30, 4, v241")
    a.e("v_xor_b32 v241, v30, v29")
    a.e("v_lshlrev_b32 v241, 4, v241")
    a.e(f"v_lshl_add_u32 v{vKB}, v31, 8, v241")
    a.e("v_lshrrev_b32 v242, 2, v29")
    a.e("v_and_b32 v243, 3, v29")
    a.e("v_and_b32 v244, 1, v28")
    a.e("v_lshlrev_b32 v245, 6, v242")
    a.e("v_lshl_add_u32 v245, v244, 5, v245")
    a.e("v_lshl_add_u32 v246, v30, 2, v242")
    a.e("v_lshl_add_u32 v246, v246, 8, v245")
    a.e(f"v_lshl_add_u32 v{vVB}, v243, 3, v246")
    a.e("v_lshl_add_u32 v246, v30, 3, v242")
    a.e("v_lshl_add_u32 v246, v246, 8, v245")
    a.e("v_and_b32 v247, 1, v243")
    a.e("v_lshlrev_b32 v247, 1, v247")
    a.e("v_lshrrev_b32 v248, 1, v243")
    a.e("v_or_b32 v247, v247, v248")
    a.e(f"v_lshl_add_u32 v{vWB}, v247, 3, v246")
    a.e("s_waitcnt lgkmcnt(0)")
    def srd(d, p, n):
        a.e(f"s_mov_b32 s{d}, s{p}")
        a.e(f"s_mov_b32 s{d+1}, s{p+1}")
        a.e(f"s_mov_b32 s{d+2}, {n}")
        a.e(f"s_mov_b32 s{d+3}, 0x00020000")
    srd(20, 4, 8 * 128 * 640 * 2)
    srd(24, 6, 67108864)
    srd(28, 8, 67108864)
    srd(32, 10, 640 * 4096 * 2)
    srd(36, 18, 268435456)
    a.e("s_lshl_b32 s53, s41, 8")

    SLOT = 16384
    def pair(p):
        return p * 32768

    def dma_k(stage, ldsbase, tag):
        a.e(f"s_add_u32 s47, s50, {ldsbase}")
        a.e("s_mov_b32 m0, s47")
        a.e(f"s_add_u32 s48, s43, {stage * 16384}")
        for j in range(4):
            a.vm(f"buffer_load_dwordx4 v{vKD[j]}, s[24:27], s48 offen offset:{j*1024}{NT} lds", tag)

    def dma_v(stage, ldsbase, tag):
        a.e(f"s_add_u32 s47, s50, {ldsbase}")
        a.e("s_mov_b32 m0, s47")
        a.e(f"s_add_u32 s48, s43, {stage * 16384}")
        for j in range(4):
            a.vm(f"buffer_load_dwordx4 v{vVD}, s[28:31], s48 offen offset:{j*1024}{NT} lds", tag)

    def dma_w(T, ldsbase, tag):
        a.e(f"s_add_u32 s47, s50, {ldsbase}")
        a.e("s_mov_b32 m0, s47")
        for j in range(4):
            a.e(f"s_add_u32 s48, s53, {T * 64 * 8192 + j * (32768 - 1024)}")
            a.vm(f"buffer_load_dwordx4 v{vWD}, s[32:35], s48 offen offset:{j*1024} lds", tag)

    def xreg(ks):
        return X + 4 * (ks % 20)

    def load_x(ks):
        a.vm(f"buffer_load_dwordx4 {vr(xreg(ks), 4)}, v{vXO}, s[20:23], 0 offen offset:{32*ks}", f"x{ks//4}")

    wslot = [pair(3), pair(3) + SLOT, pair(4), pair(4) + SLOT, pair(2), pair(2) + SLOT,
             pair(3), pair(3) + SLOT, pair(4), pair(4) + SLOT]
    a.c("prologue loads")
    dma_k(0, pair(0), "s0"); dma_v(0, pair(0) + SLOT, "s0")
    dma_k(1, pair(1), "s1"); dma_v(1, pair(1) + SLOT, "s1")
    for ks in range(20):
        load_x(ks)
    for T in range(6):
        dma_w(T, wslot[T], f"w{T}")

    def post(i):
        if 1 <= i <= 4:
            dma_w(5 + i, wslot[5 + i], f"w{5+i}")
        elif i == 5:
            dma_k(2, pair(2), "s2")
        elif i == 6:
            dma_v(2, pair(2) + SLOT, "s2")
        elif i == 7:
            dma_k(3, pair(3), "s3")
        elif i == 8:
            dma_v(3, pair(3) + SLOT, "s3")
        elif i == 9:
            dma_k(4, pair(4), "s4")
        elif i == 10:
            dma_v(4, pair(4) + SLOT, "s4")
        if 1 <= i <= 5:
            for ks in range(20 + 4 * (i - 1), 20 + 4 * i):
                load_x(ks)

    for T in range(10):
        a.c(f"Q projection tile {T}")
        a.wait_vm({f"w{T}", f"x{T}"})
        a.e("s_barrier")
        post(T)
        a.e(f"v_add_u32 v{vVA[0]}, {wslot[T]}, v{vWB}")
        for dt in range(1, 4):
            a.e(f"v_xor_b32 v{vVA[dt]}, {dt << 6}, v{vVA[0]}")
        items = []
        for sp in range(4):
            for dt in range(4):
                reads = [(f"ds_read_b64_tr_b16 {{d}}, v{vVA[dt]} offset:{(16*sp + 4*sec)*256}", 2 * sec, 2) for sec in range(2)]
                acc = vr(O + 16 * dt, 16)
                cin = "0" if (T == 0 and sp == 0) else acc
                items.append((reads, f"v_mfma_f32_32x32x16_bf16 {acc}, {{a}}, {vr(xreg(4*T+sp), 4)}, {cin}"))
        mfma_pipeline(a, items, BUF, 6)
    a.e("s_barrier")
    post(10)
    a.c("convert Q to bf16 B-operand layout")
    a.e("s_nop 7")
    a.e("s_nop 3")
    for dt in range(4):
        for s in range(2):
            for j in range(4):
                src = O + 16 * dt + 8 * s + 2 * j
                a.e(f"v_cvt_pk_bf16_f32 v{Q + 4*(2*dt+s) + j}, v{src}, v{src+1}")
    for i in range(64):
        a.e(f"v_mov_b32 v{O+i}, 0")
    a.e(f"v_mov_b32 v{vM}, 0xff800000")
    a.e(f"v_mov_b32 v{vL}, 0")
    a.e("s_mov_b32 s44, 0")
    a.e("s_mov_b32 s45, 0")
    a.e(f"s_mov_b32 s46, {pair(4)}")
    a.e(f"s_add_u32 s54, s43, {4*16384}")

    a.label("L_attn_loop")
    a.e("s_cmp_ge_u32 s44, 13")
    a.e("s_cbranch_scc1 L_attn_wtail")
    a.e("s_waitcnt vmcnt(24)")
    a.e("s_branch L_attn_wdone")
    a.label("L_attn_wtail")
    a.e("s_cmp_eq_u32 s44, 13")
    a.e("s_cbranch_scc0 L_attn_wtail2")
    a.e("s_waitcnt vmcnt(16)")
    a.e("s_branch L_attn_wdone")
    a.label("L_attn_wtail2")
    a.e("s_cmp_eq_u32 s44, 14")
    a.e("s_cbranch_scc0 L_attn_wtail3")
    a.e("s_waitcnt vmcnt(8)")
    a.e("s_branch L_attn_wdone")
    a.label("L_attn_wtail3")
    a.e("s_waitcnt vmcnt(0)")
    a.label("L_attn_wdone")
    a.e("s_barrier")
    a.e("s_sub_u32 s47, s44, 1")
    a.e("s_cmp_ge_u32 s47, 11")
    a.e("s_cbranch_scc1 L_attn_nodma")
    a.e("s_add_u32 s47, s50, s46")
    a.e("s_mov_b32 m0, s47")
    a.e("s_add_u32 s47, s47, 16384")
    for j in range(4):
        a.e(f"buffer_load_dwordx4 v{vKD[j]}, s[24:27], s54 offen offset:{j*1024}{NT} lds")
    a.e("s_mov_b32 m0, s47")
    a.e("s_nop 0")
    for j in range(4):
        a.e(f"buffer_load_dwordx4 v{vVD}, s[28:31], s54 offen offset:{j*1024}{NT} lds")
    a.label("L_attn_nodma")
    a.e(f"v_add_u32 v{vKA[0]}, s45, v{vKB}")
    for s in range(1, 8):
        a.e(f"v_xor_b32 v{vKA[s]}, {s << 5}, v{vKA[0]}")
    a.e("s_add_u32 s47, s45, 16384")
    a.e(f"v_add_u32 v{vVA[0]}, s47, v{vVB}")
    for dt in range(1, 4):
        a.e(f"v_xor_b32 v{vVA[dt]}, {dt << 6}, v{vVA[0]}")
    a.c("QK^T")
    items = []
    for kt in range(2):
        for s in range(8):
            reads = [(f"ds_read_b128 {{d}}, v{vKA[s]} offset:{kt*8192}", 0, 4)]
            acc = vr(S + 16 * kt, 16)
            cin = "0" if s == 0 else acc
            items.append((reads, f"v_mfma_f32_32x32x16_bf16 {acc}, {{a}}, {vr(Q + 4*s, 4)}, {cin}"))
    mfma_pipeline(a, items, BUF, 8)
    a.c("softmax")
    t0, t1, t2, t3 = vT
    def maxchain(dst, base):
        a.e(f"v_max3_f32 v{dst}, v{base}, v{base+1}, v{base+2}")
        for i in range(3, 15, 2):
            a.e(f"v_max3_f32 v{dst}, v{dst}, v{base+i}, v{base+i+1}")
        a.e(f"v_max_f32 v{dst}, v{dst}, v{base+15}")
    maxchain(t0, S)
    a.e("s_nop 4")
    maxchain(t1, S + 16)
    a.e(f"v_max_f32 v{t0}, v{t0}, v{t1}")
    a.e(f"v_mov_b32 v{t1}, v{t0}")
    a.e("s_nop 1")
    a.e(f"v_permlane32_swap_b32 v{t0}, v{t1}")
    a.e("s_nop 1")
    a.e(f"v_max3_f32 v{t0}, v{t0}, v{t1}, v{vM}")
    a.e(f"v_sub_f32 v{t2}, v{vM}, v{t0}")
    a.e(f"v_mul_f32 v{t2}, s49, v{t2}")
    a.e(f"v_exp_f32 v{vAL}, v{t2}")
    a.e(f"v_mul_f32 v{vMC}, s49, v{t0}")
    a.e(f"v_mov_b32 v{vM}, v{t0}")
    for i in range(32):
        a.e(f"v_fma_f32 v{S+i}, v{S+i}, s49, -v{vMC}")
    for i in range(32):
        a.e(f"v_exp_f32 v{S+i}, v{S+i}")
    a.e(f"v_mul_f32 v{vL}, v{vL}, v{vAL}")
    a.e(f"v_add_f32 v{t0}, v{S+0}, v{S+1}")
    a.e(f"v_add_f32 v{t1}, v{S+2}, v{S+3}")
    a.e(f"v_add_f32 v{t2}, v{S+4}, v{S+5}")
    a.e(f"v_add_f32 v{t3}, v{S+6}, v{S+7}")
    for i in range(8, 32, 4):
        a.e(f"v_add_f32 v{t0}, v{t0}, v{S+i}")
        a.e(f"v_add_f32 v{t1}, v{t1}, v{S+i+1}")
        a.e(f"v_add_f32 v{t2}, v{t2}, v{S+i+2}")
        a.e(f"v_add_f32 v{t3}, v{t3}, v{S+i+3}")
    for j in range(16):
        a.e(f"v_cvt_pk_bf16_f32 v{P+j}, v{S+2*j}, v{S+2*j+1}")
    a.e(f"v_add_f32 v{t0}, v{t0}, v{t1}")
    a.e(f"v_add_f32 v{t2}, v{t2}, v{t3}")
    a.e(f"v_add_f32 v{t0}, v{t0}, v{t2}")
    a.e(f"v_add_f32 v{vL}, v{vL}, v{t0}")
    for i in range(64):
        a.e(f"v_mul_f32 v{O+i}, v{O+i}, v{vAL}")
    a.c("PV")
    items = []
    for ks in range(4):
        for dt in range(4):
            reads = [(f"ds_read_b64_tr_b16 {{d}}, v{vVA[dt]} offset:{(16*ks + 8*sec)*256}", 2 * sec, 2) for sec in range(2)]
            acc = vr(O + 16 * dt, 16)
            items.append((reads, f"v_mfma_f32_32x32x16_bf16 {acc}, {{a}}, {vr(P + 4*ks, 4)}, {acc}"))
    mfma_pipeline(a, items, BUF, 6)
    a.c("loop control")
    a.e("s_mov_b32 s46, s45")
    a.e("s_add_u32 s45, s45, 32768")
    a.e("s_cmp_eq_u32 s45, 163840")
    a.e("s_cselect_b32 s45, 0, s45")
    a.e("s_add_u32 s54, s54, 16384")
    a.e("s_add_u32 s44, s44, 1")
    a.e("s_cmp_lt_u32 s44, 16")
    a.e("s_cbranch_scc1 L_attn_loop")

    a.c("epilogue")
    a.e(f"v_mov_b32 v{t0}, v{vL}")
    a.e(f"v_mov_b32 v{t1}, v{vL}")
    a.e("s_nop 1")
    a.e(f"v_permlane32_swap_b32 v{t0}, v{t1}")
    a.e("s_nop 1")
    a.e(f"v_add_f32 v{t0}, v{t0}, v{t1}")
    a.e(f"v_rcp_f32 v{t0}, v{t0}")
    a.e(f"v_and_b32 v{t1}, 31, v{vLANE}")
    a.e(f"v_lshrrev_b32 v{t2}, 5, v{vLANE}")
    a.e(f"v_lshlrev_b32 v{t1}, 8, v{t1}")
    a.e(f"v_lshl_add_u32 v{t1}, v{t2}, 4, v{t1}")
    a.e("s_lshl_b32 s47, s2, 15")
    a.e("s_lshl_b32 s48, s40, 13")
    a.e("s_add_u32 s47, s47, s48")
    a.e("s_nop 4")
    for i in range(64):
        a.e(f"v_mul_f32 v{O+i}, v{O+i}, v{t0}")
    k = 0
    for dt in range(4):
        for a2 in range(2):
            src = O + 16 * dt + 8 * a2
            d = S + 4 * (k % 8)
            a.e(f"v_cvt_pk_bf16_f32 v{d}, v{src}, v{src+1}")
            a.e(f"v_cvt_pk_bf16_f32 v{d+1}, v{src+2}, v{src+3}")
            a.e(f"v_cvt_pk_bf16_f32 v{d+2}, v{src+4}, v{src+5}")
            a.e(f"v_cvt_pk_bf16_f32 v{d+3}, v{src+6}, v{src+7}")
            a.e("s_nop 1")
            a.e(f"v_permlane32_swap_b32 v{d}, v{d+2}")
            a.e(f"v_permlane32_swap_b32 v{d+1}, v{d+3}")
            a.e("s_nop 1")
            a.e(f"buffer_store_dwordx4 {vr(d, 4)}, v{t1}, s[36:39], s47 offen offset:{(32*dt + 16*a2)*2}")
            k += 1
    a.label("L_attn_end")
    a.e("s_endpgm")


PART_OFF = 8388608
PART_STRIDE = 1024 * 640 * 4

def gen_oproj(a, opt):
    vLANE = 1
    vWD = [2, 3, 4, 5, 6]
    vOO = 7
    vRB = 8
    vRA = 9
    vST = 10
    ACC = 16
    B = 96
    BUF = [224 + 4 * i for i in range(8)]
    a.vq = []
    a.label("oproj_kernel")
    a.e("s_cmp_ge_u32 s2, 256")
    a.e("s_cbranch_scc1 L_oproj_end")
    a.e("s_load_dwordx2 s[4:5], s[0:1], 32")
    a.e("s_load_dwordx2 s[6:7], s[0:1], 56")
    a.e(f"v_and_b32 v{vLANE}, 63, v0")
    a.e("v_lshrrev_b32 v11, 6, v0")
    a.e("s_nop 0")
    a.e("v_readfirstlane_b32 s40, v11")
    a.e("s_and_b32 s41, s2, 7")
    a.e("s_lshr_b32 s42, s2, 3")
    a.e("s_and_b32 s43, s42, 3")
    a.e("s_lshr_b32 s42, s42, 2")
    a.e("s_movk_i32 s44, 3277")
    a.e("s_movk_i32 s45, 1280")
    a.e("s_lshl_b32 s46, s40, 4")
    for j in range(5):
        a.e(f"v_add_u32 v11, {64*j}, v{vLANE}")
        a.e("v_mul_lo_u32 v12, v11, s44")
        a.e("v_lshrrev_b32 v12, 16, v12")
        a.e("v_mul_u32_u24 v13, 20, v12")
        a.e("v_sub_u32 v13, v11, v13")
        a.e("v_add_u32 v12, s46, v12")
        a.e("v_mul_lo_u32 v12, v12, s45")
        a.e(f"v_lshl_add_u32 v{vWD[j]}, v13, 4, v12")
    a.e(f"v_and_b32 v11, 31, v{vLANE}")
    a.e(f"v_lshrrev_b32 v12, 5, v{vLANE}")
    a.e("s_lshl_b32 s46, s40, 5")
    a.e("v_add_u32 v13, s46, v11")
    a.e("v_lshlrev_b32 v14, 8, v13")
    a.e(f"v_lshl_add_u32 v{vOO}, v12, 4, v14")
    a.e("s_lshl_b32 s46, s42, 7")
    a.e("v_add_u32 v13, s46, v13")
    a.e("s_movk_i32 s46, 2560")
    a.e("v_mul_lo_u32 v13, v13, s46")
    a.e(f"v_lshl_add_u32 v{vST}, v12, 4, v13")
    a.e(f"v_and_b32 v13, 15, v{vLANE}")
    a.e("v_lshrrev_b32 v14, 2, v13")
    a.e("v_and_b32 v13, 3, v13")
    a.e("v_lshl_add_u32 v14, v12, 3, v14")
    a.e("v_mul_u32_u24 v14, 320, v14")
    a.e(f"v_lshrrev_b32 v15, 4, v{vLANE}")
    a.e("v_and_b32 v15, 1, v15")
    a.e("v_lshl_add_u32 v14, v15, 5, v14")
    a.e(f"v_lshl_add_u32 v{vRB}, v13, 3, v14")
    a.e("s_waitcnt lgkmcnt(0)")
    a.e("s_mov_b32 s20, s4"); a.e("s_mov_b32 s21, s5"); a.e(f"s_mov_b32 s22, {4096*640*2}"); a.e("s_mov_b32 s23, 0x00020000")
    a.e("s_mov_b32 s24, s6"); a.e("s_mov_b32 s25, s7"); a.e("s_mov_b32 s26, 268435456"); a.e("s_mov_b32 s27, 0x00020000")
    a.e("s_mul_i32 s47, s41, 163840")
    a.e("s_mul_i32 s48, s43, 320")
    a.e("s_add_u32 s47, s47, s48")
    a.e("s_lshl_b32 s48, s42, 5")
    a.e("s_add_u32 s48, s48, s41")
    a.e("s_lshl_b32 s48, s48, 15")
    a.e("s_mul_i32 s49, s40, 5120")
    def dma_w(T):
        u, half = T // 2, T % 2
        a.e(f"s_add_u32 s50, s47, {(8*u*128 + 64*half)*1280}")
        for j in range(5):
            a.e(f"s_add_u32 s51, s49, {T*20480 + j*1024}")
            a.e("s_mov_b32 m0, s51")
            a.e("s_nop 0")
            a.vm(f"buffer_load_dwordx4 v{vWD[j]}, s[20:23], s50 offen lds", f"w{T}")
    def load_o(T):
        u, half = T // 2, T % 2
        a.e(f"s_add_u32 s50, s48, {8*u*32768}")
        for sp in range(4):
            ks = 4 * T + sp
            a.vm(f"buffer_load_dwordx4 {vr(B + 4*ks, 4)}, v{vOO}, s[24:27], s50 offen offset:{32*(4*half+sp)}", f"w{T}")
    for T in range(7):
        dma_w(T)
        load_o(T)
    for T in range(8):
        a.c(f"tile {T}")
        a.wait_vm({f"w{T}"})
        a.e("s_barrier")
        if T == 0:
            dma_w(7)
            load_o(7)
        a.e(f"v_add_u32 v{vRA}, {T*20480}, v{vRB}")
        items = []
        for sp in range(4):
            for ct in range(5):
                reads = [(f"ds_read_b64_tr_b16 {{d}}, v{vRA} offset:{(16*sp + 4*sec)*320 + ct*64}", 2 * sec, 2) for sec in range(2)]
                acc = vr(ACC + 16 * ct, 16)
                cin = "0" if (T == 0 and sp == 0) else acc
                items.append((reads, f"v_mfma_f32_32x32x16_bf16 {acc}, {{a}}, {vr(B + 4*(4*T+sp), 4)}, {cin}"))
        mfma_pipeline(a, items, BUF, 6)
    a.e(f"s_mul_i32 s50, s41, {PART_STRIDE}")
    a.e("s_mul_i32 s51, s43, 640")
    a.e("s_add_u32 s50, s50, s51")
    a.e(f"s_add_u32 s50, s50, {PART_OFF}")
    a.e("s_nop 7")
    a.e("s_nop 3")
    for ct in range(5):
        for g in range(4):
            a.e(f"buffer_store_dwordx4 {vr(ACC + 16*ct + 4*g, 4)}, v{vST}, s[24:27], s50 offen offset:{128*ct + 32*g}")
    a.label("L_oproj_end")
    a.e("s_endpgm")


def gen_reduce(a, opt):
    a.label("reduce_kernel")
    a.e("s_cmp_ge_u32 s2, 320")
    a.e("s_cbranch_scc1 L_reduce_end")
    a.e("s_load_dwordx2 s[4:5], s[0:1], 40")
    a.e("s_load_dwordx2 s[6:7], s[0:1], 56")
    a.e("s_lshl_b32 s3, s2, 8")
    a.e("v_add_u32 v1, s3, v0")
    a.e("v_lshlrev_b32 v2, 5, v1")
    a.e("v_lshlrev_b32 v3, 4, v1")
    a.e("s_waitcnt lgkmcnt(0)")
    a.e("s_mov_b32 s20, s4"); a.e("s_mov_b32 s21, s5"); a.e(f"s_mov_b32 s22, {1024*640*2}"); a.e("s_mov_b32 s23, 0x00020000")
    a.e("s_mov_b32 s24, s6"); a.e("s_mov_b32 s25, s7"); a.e("s_mov_b32 s26, 268435456"); a.e("s_mov_b32 s27, 0x00020000")
    for ks in range(8):
        a.e(f"s_mov_b32 s30, {PART_OFF + ks*PART_STRIDE}")
        a.e(f"buffer_load_dwordx4 {vr(8 + 8*ks, 4)}, v2, s[24:27], s30 offen")
        a.e(f"buffer_load_dwordx4 {vr(12 + 8*ks, 4)}, v2, s[24:27], s30 offen offset:16")
    for ks in range(1, 8):
        a.e(f"s_waitcnt vmcnt({2*(7-ks)})")
        for i in range(8):
            a.e(f"v_add_f32 v{8+i}, v{8+i}, v{8+8*ks+i}")
    for j in range(4):
        a.e(f"v_cvt_pk_bf16_f32 v{4+j}, v{8+2*j}, v{9+2*j}")
    a.e("buffer_store_dwordx4 v[4:7], v3, s[20:23], 0 offen")
    a.label("L_reduce_end")
    a.e("s_endpgm")


def kd(name, vgpr, sgpr=102):
    acc = (vgpr + 3) // 4 * 4
    return f""".amdhsa_kernel {name}
  .amdhsa_next_free_vgpr {vgpr}
  .amdhsa_next_free_sgpr {sgpr}
  .amdhsa_accum_offset {acc}
  .amdhsa_group_segment_fixed_size 0
  .amdhsa_kernarg_size 64
  .amdhsa_user_sgpr_count 2
  .amdhsa_user_sgpr_kernarg_segment_ptr 1
  .amdhsa_system_sgpr_workgroup_id_x 1
.end_amdhsa_kernel
"""


def main():
    out = sys.argv[1] if len(sys.argv) > 1 else "standalone__mha_block_cached__near_ridge.s"
    opt = {}
    for kv in sys.argv[2:]:
        k, v = kv.split("=")
        opt[k] = int(v)
    txt = HEADER
    txt += "; @launch kernel=attn_kernel grid=(256,1,1) block=(256,1,1) lds=163840\n"
    txt += "; @launch kernel=oproj_kernel grid=(256,1,1) block=(256,1,1) lds=163840\n"
    txt += "; @launch kernel=reduce_kernel grid=(320,1,1) block=(256,1,1) lds=0\n"
    txt += '.amdgcn_target "amdgcn-amd-amdhsa--gfx950"\n.text\n'
    for name, fn in (("attn_kernel", gen_attn), ("oproj_kernel", gen_oproj), ("reduce_kernel", gen_reduce)):
        a = Asm()
        fn(a, opt)
        txt += f".globl {name}\n.p2align 8\n.type {name},@function\n" + a.text()
    txt += '.section .rodata,"a"\n'
    for name, v in (("attn_kernel", 256), ("oproj_kernel", 256), ("reduce_kernel", 72)):
        txt += ".p2align 6\n" + kd(name, v)
    open(out, "w").write(txt)


if __name__ == "__main__":
    main()
```

```python
import re, struct


def f32bits(x):
    return struct.unpack("<I", struct.pack("<f", x))[0]


def vr(a, n):
    return f"v[{a}:{a+n-1}]"


def ar(a, n):
    return f"a[{a}:{a+n-1}]"


class Asm:
    def __init__(self):
        self.lines = []
        self.vq = []

    def e(self, s):
        self.lines.append("    " + s)

    def ext(self, lst):
        for s in lst:
            self.e(s)

    def label(self, s):
        self.lines.append(s + ":")

    def c(self, s):
        self.lines.append("    ; " + s)

    def vm(self, s, tag):
        self.e(s)
        self.vq.append(tag)

    def vm_count_after(self, tags):
        last = -1
        for i, t in enumerate(self.vq):
            if t in tags:
                last = i
        return last, len(self.vq) - 1 - last

    def wait_vm(self, tags):
        last, n = self.vm_count_after(tags)
        if last < 0:
            return
        assert n <= 63
        self.e(f"s_waitcnt vmcnt({n})")
        self.vq = self.vq[last + 1:]

    def text(self):
        return "\n".join(self.lines) + "\n"


def mfma_stream(items, bufs, look, pre=None):
    n = len(items)
    nb = len(bufs)
    assert nb >= look + 1

    def rd(i):
        b = bufs[i % nb]
        return [fmt.format(d=vr(b + off, nr)) for fmt, off, nr in items[i][0]]

    head = list(pre or [])
    for i in range(min(look, n)):
        head += rd(i)
    groups = []
    for i in range(n):
        pend = sum(len(items[j][0]) for j in range(i + 1, min(i + look, n)))
        assert pend <= 15
        g = [f"s_waitcnt lgkmcnt({pend})", items[i][1].format(a=vr(bufs[i % nb], 4))]
        if i + look < n:
            g += rd(i + look)
        groups.append(g)
    return head, groups


def merge(head, groups, valu, lead=0, weights=None):
    out = list(head)
    out += valu[:lead]
    rest = valu[lead:]
    n = len(groups)

    def cost(s):
        return 2 if re.match(r"v_(exp|rcp|log|rsq|sqrt)", s) else 1
    total = sum(cost(s) for s in rest)
    k = 0
    acc = 0
    for i, g in enumerate(groups):
        out += g
        target = total * (i + 1) / n
        while k < len(rest) and (acc + cost(rest[k]) <= target + 0.5 or i == n - 1):
            out.append(rest[k])
            acc += cost(rest[k])
            k += 1
    return out


_REG = re.compile(r"\b([va])(?:\[(\d+):(\d+)\]|(\d+))")


def _regs(tok):
    r = set()
    for m in _REG.finditer(tok):
        k = m.group(1)
        if m.group(2) is not None:
            for i in range(int(m.group(2)), int(m.group(3)) + 1):
                r.add((k, i))
        else:
            r.add((k, int(m.group(4))))
    return r


def _parse(line):
    s = line.strip()
    if not s or s.startswith(";") or s.endswith(":") or s.startswith("."):
        return None
    s = s.split(";")[0].strip()
    op, _, rest = s.partition(" ")
    ops = [o.strip() for o in rest.split(",")] if rest else []
    d = {"op": op, "dst": set(), "src": set(), "slots": 1, "text": s}
    if op == "s_nop":
        d["slots"] = int(ops[0], 0) + 1
        return d
    if op.startswith("s_"):
        return d
    if op.startswith("v_mfma"):
        d["dst"] = _regs(ops[0]); d["srcA"] = _regs(ops[1]) | _regs(ops[2]); d["srcC"] = _regs(ops[3])
        d["src"] = d["srcA"] | d["srcC"]
        return d
    if op.startswith("v_permlane32_swap") or op.startswith("v_permlane16_swap"):
        d["dst"] = _regs(ops[0]) | _regs(ops[1]); d["src"] = set(d["dst"])
        return d
    if op.startswith("v_cmp") or op.startswith("v_readfirstlane") or op.startswith("v_readlane"):
        for o in ops[1:]:
            d["src"] |= _regs(o)
        return d
    if op.startswith("v_"):
        d["dst"] = _regs(ops[0])
        for o in ops[1:]:
            d["src"] |= _regs(o)
        if op.startswith("v_fmac") or op.startswith("v_writelane"):
            d["src"] |= d["dst"]
        return d
    if op.startswith("ds_read"):
        d["dst"] = _regs(ops[0]); d["src"] = _regs(ops[1].split()[0])
        return d
    if op.startswith("ds_write"):
        for o in ops:
            d["src"] |= _regs(o.split()[0])
        return d
    if op.startswith("buffer_load"):
        if " lds" in s:
            d["src"] = _regs(ops[0])
        else:
            d["dst"] = _regs(ops[0]); d["src"] = _regs(ops[1])
        return d
    if op.startswith("buffer_store") or op.startswith("buffer_atomic"):
        d["src"] = _regs(ops[0]) | _regs(ops[1]); d["store"] = _regs(ops[0])
        return d
    if op.startswith("global_load"):
        d["dst"] = _regs(ops[0]); d["src"] = _regs(ops[1])
        return d
    if op.startswith("global_store") or op.startswith("global_atomic"):
        for o in ops:
            d["src"] |= _regs(o)
        return d
    return d


TRANS = re.compile(r"v_(exp|rcp|log|rsq|sqrt|sin|cos)_")


def check_hazards(lines, name=""):
    ins = [p for p in (_parse(l) for l in lines) if p]
    errs = []
    for i, c in enumerate(ins):
        dist = 0
        for j in range(i - 1, max(-1, i - 40), -1):
            p = ins[j]
            isv = p["op"].startswith("v_") and not p["op"].startswith("v_mfma")
            if p["op"].startswith("v_mfma"):
                need = 12 if "32x32" in p["op"] else 8
                touched = (c["src"] | c["dst"]) & p["dst"]
                if touched:
                    if c["op"].startswith("v_mfma"):
                        if c["srcA"] & p["dst"]:
                            if dist < need:
                                errs.append((i, f"MFMA D -> MFMA A/B {dist}<{need}", p["text"], c["text"]))
                        elif c["srcC"] & p["dst"]:
                            if c["srcC"] != p["dst"] and dist < need - 2:
                                errs.append((i, f"MFMA D -> partial C {dist}", p["text"], c["text"]))
                        elif dist < need - 2 and c["dst"] & p["dst"]:
                            errs.append((i, f"MFMA D -> MFMA D WAW {dist}", p["text"], c["text"]))
                    elif dist < need:
                        errs.append((i, f"MFMA D -> {c['op']} {dist}<{need}", p["text"], c["text"]))
                war = 7 if "32x32" in p["op"] else 3
                if c["op"].startswith("v_") and not c["op"].startswith("v_mfma") and (c["dst"] & p["srcC"]) and dist < war:
                    errs.append((i, f"MFMA C WAR {dist}<{war}", p["text"], c["text"]))
            elif isv:
                if c["op"].startswith("v_mfma") and (c["src"] & p["dst"]) and dist < 2:
                    errs.append((i, f"VALU -> MFMA {dist}<2", p["text"], c["text"]))
                if c["op"].startswith("v_permlane") and (c["src"] & p["dst"]) and dist < 2:
                    errs.append((i, f"VALU -> permlane {dist}<2", p["text"], c["text"]))
                if TRANS.match(p["op"]) and c["op"].startswith("v_") and not TRANS.match(c["op"]) and (c["src"] & p["dst"]) and dist < 1:
                    errs.append((i, f"trans -> VALU {dist}<1", p["text"], c["text"]))
                if (c["op"].startswith("v_readfirstlane") or c["op"].startswith("v_readlane")) and (c["src"] & p["dst"]) and dist < 1:
                    errs.append((i, f"VALU -> readlane {dist}<1", p["text"], c["text"]))
            if "store" in p and (c["dst"] & p["store"]) and dist < 2:
                errs.append((i, f"store data WAR {dist}<2", p["text"], c["text"]))
            if p["op"] == "s_mov_b32" and p["text"].startswith("s_mov_b32 m0") and " lds" in c["text"] and dist < 1:
                errs.append((i, "m0 -> lds dma", p["text"], c["text"]))
            dist += p["slots"]
            if dist > 20:
                break
    for e in errs:
        print(f"HAZARD[{name}]", e)
    return errs
```

```python
import sys, math, os
sys.path.insert(0, os.path.dirname(os.path.abspath(__file__)))
from asmlib import *

HEADER = """; Kernarg layout for this problem (64 bytes, ptrs only, base s[0:1]):
"""

MFMA = "v_mfma_f32_32x32x16_bf16"
SLOT = 16384
OOB = 0x40000000


def srd(a, d, p, n):
    a.e(f"s_mov_b32 s{d}, s{p}")
    a.e(f"s_mov_b32 s{d+1}, s{p+1}")
    a.e(f"s_mov_b32 s{d+2}, {n}")
    a.e(f"s_mov_b32 s{d+3}, 0x00020000")


def gen_attn(a, opt):
    NT = " nt" if opt.get("nt", 1) else ""
    STAMP = opt.get("stamp", 0)
    SCALE = (128 ** -0.5) * math.log2(math.e)
    vLANE = 1
    vKD = [2, 3, 4, 5]
    vVD, vWD, vXE, vXOd = 6, 7, 8, 9
    vKB, vVB, vWB, vXB = 10, 11, 12, 13
    vKA = list(range(14, 22))
    vVA = list(range(22, 26))
    vM, vL, vAL, vMC = 26, 27, 28, 29
    t0, t1, t2, t3 = 30, 31, 240, 241
    O = 32
    SS = [96, 128]
    P = 160
    BUF = [176 + 4 * i for i in range(16)]
    XB = [96, 112]
    Q = 0

    def stamp(idx):
        if not STAMP:
            return
        a.e("s_memtime s[60:61]")
        a.e("s_waitcnt lgkmcnt(0)")
        a.e(f"v_writelane_b32 v255, s60, {idx}")

    a.label("attn_kernel")
    a.e("s_cmp_ge_u32 s2, 256")
    a.e("s_cbranch_scc1 L_attn_end")
    if STAMP:
        a.e("v_mov_b32 v255, 0")
    stamp(0)
    a.e("s_load_dwordx8 s[4:11], s[0:1], 0")
    a.e("s_load_dwordx8 s[12:19], s[0:1], 32")
    a.e(f"v_and_b32 v{vLANE}, 63, v0")
    a.e("v_lshrrev_b32 v242, 6, v0")
    a.e("s_nop 0")
    a.e("v_readfirstlane_b32 s40, v242")
    a.e("s_and_b32 s41, s2, 31")
    a.e("s_lshr_b32 s42, s2, 5")
    a.e("s_mov_b32 s55, s2")
    a.e("s_lshl_b32 s43, s55, 18")
    a.e(f"s_mov_b32 s49, {f32bits(SCALE):#x}")
    a.e("s_lshl_b32 s53, s41, 8")
    a.e("s_mul_i32 s59, s42, 163840")
    a.e("s_lshl_b32 s50, s40, 12")
    a.e(f"v_lshrrev_b32 v242, 4, v{vLANE}")
    a.e(f"v_and_b32 v243, 15, v{vLANE}")
    a.e(f"v_lshrrev_b32 v244, 5, v{vLANE}")
    a.e(f"v_and_b32 v245, 31, v{vLANE}")
    a.e("v_xor_b32 v246, v243, v242")
    a.e("v_lshlrev_b32 v246, 4, v246")
    a.e(f"v_lshl_add_u32 v{vKD[0]}, v242, 8, v246")
    for j in range(1, 4):
        a.e(f"v_xor_b32 v{vKD[j]}, {j << 6}, v{vKD[0]}")
    a.e("v_lshlrev_b32 v246, 2, v242")
    a.e("v_xor_b32 v246, v243, v246")
    a.e("v_lshlrev_b32 v246, 4, v246")
    a.e(f"v_lshl_add_u32 v{vVD}, v242, 8, v246")
    a.e(f"v_lshl_add_u32 v{vWD}, v242, 13, v246")
    a.e(f"v_lshrrev_b32 v246, 3, v{vLANE}")
    a.e("v_mul_u32_u24 v246, 1280, v246")
    a.e(f"v_and_b32 v247, 7, v{vLANE}")
    a.e("v_xor_b32 v247, v247, v242")
    a.e(f"v_lshl_add_u32 v{vXE}, v247, 4, v246")
    a.e(f"v_xor_b32 v{vXOd}, 64, v{vXE}")
    a.e("v_xor_b32 v246, v244, v243")
    a.e("v_lshlrev_b32 v246, 4, v246")
    a.e(f"v_lshl_add_u32 v{vKB}, v245, 8, v246")
    a.e("v_lshrrev_b32 v246, 1, v245")
    a.e("v_and_b32 v246, 7, v246")
    a.e("v_xor_b32 v246, v244, v246")
    a.e("v_lshlrev_b32 v246, 4, v246")
    a.e("v_lshl_add_u32 v246, v245, 7, v246")
    a.e(f"v_add_u32 v{vXB}, s50, v246")
    a.e("v_lshrrev_b32 v246, 2, v243")
    a.e("v_and_b32 v247, 3, v243")
    a.e("v_and_b32 v248, 1, v242")
    a.e("v_lshlrev_b32 v249, 6, v246")
    a.e("v_lshl_add_u32 v249, v248, 5, v249")
    a.e("v_lshl_add_u32 v250, v244, 2, v246")
    a.e("v_lshl_add_u32 v250, v250, 8, v249")
    a.e(f"v_lshl_add_u32 v{vVB}, v247, 3, v250")
    a.e("v_lshl_add_u32 v250, v244, 3, v246")
    a.e("v_lshl_add_u32 v250, v250, 8, v249")
    a.e("v_and_b32 v251, 1, v247")
    a.e("v_lshlrev_b32 v251, 1, v251")
    a.e("v_lshrrev_b32 v252, 1, v247")
    a.e("v_or_b32 v251, v251, v252")
    a.e(f"v_lshl_add_u32 v{vWB}, v251, 3, v250")
    a.e("s_waitcnt lgkmcnt(0)")
    srd(a, 20, 4, 8 * 128 * 640 * 2)
    srd(a, 24, 6, 67108864)
    srd(a, 28, 8, 67108864)
    srd(a, 32, 10, 640 * 4096 * 2)
    srd(a, 36, 18, 268435456)
    a.e("s_and_b32 s51, s40, 1")
    a.e("s_lshl_b32 s52, s51, 13")

    qQ, qKV = [], []

    def tile_kind(n):
        if n == 0:
            return ("k", 0)
        if n % 2:
            return ("k", (n + 1) // 2)
        return ("v", n // 2 - 1)

    def dma_kv_quarter(n, qsreg, qadd, queues):
        kind, idx = tile_kind(n)
        a.e(f"s_add_u32 s47, s{qsreg}, {(n % 10) * SLOT + qadd}")
        a.e("s_mov_b32 m0, s47")
        a.e(f"s_add_u32 s48, s{qsreg}, {idx * 16384 + qadd}")
        a.e("s_add_u32 s48, s48, s43")
        for j in range(4):
            if kind == "k":
                a.e(f"buffer_load_dwordx4 v{vKD[j]}, s[24:27], s48 offen offset:{j*1024}{NT} lds")
            else:
                a.e(f"buffer_load_dwordx4 v{vVD}, s[28:31], s48 offen offset:{j*1024}{NT} lds")
            for q in queues:
                q.append(f"t{n}")

    def qbuf(i):
        return (4 + 2 * ((i + 2) % 3)) * SLOT

    def dma_q(T):
        base = qbuf(T)
        for g in range(2):
            a.e(f"s_add_u32 s47, s52, {base + g * 4096}")
            a.e("s_mov_b32 m0, s47")
            a.e("s_lshl_b32 s48, s51, 18")
            a.e("s_add_u32 s48, s48, s53")
            a.e(f"s_add_u32 s48, s48, {(64 * T + 16 * g) * 8192}")
            for j in range(4):
                a.e(f"buffer_load_dwordx4 v{vWD}, s[32:35], s48 offen offset:{j*1024} lds")
                qQ.append(f"q{T}")
                if j < 3:
                    a.e(f"s_add_u32 s48, s48, {32768 - 1024}")
        for g in range(2):
            a.e(f"s_add_u32 s47, s52, {base + SLOT + g * 4096}")
            a.e("s_mov_b32 m0, s47")
            a.e("s_mul_i32 s48, s51, 81920")
            a.e("s_add_u32 s48, s48, s59")
            a.e(f"s_add_u32 s48, s48, {32 * g * 1280 + T * 128}")
            for j in range(4):
                a.e(f"buffer_load_dwordx4 v{vXOd if j & 1 else vXE}, s[20:23], s48 offen offset:{j*1024} lds")
                qQ.append(f"q{T}")
                if j < 3:
                    a.e(f"s_add_u32 s48, s48, {10240 - 1024}")

    def wait_q(q, tags):
        last = max([i for i, t in enumerate(q) if t in tags], default=-1)
        if last < 0:
            return
        n = len(q) - 1 - last
        assert n <= 63
        a.e(f"s_waitcnt vmcnt({n})")
        del q[:last + 1]

    a.c("prologue loads (role split: waves 0,1 = Q stages, waves 2,3 = K/V tiles)")
    a.e("s_cmp_lt_u32 s40, 2")
    a.e("s_cbranch_scc0 L_attn_p_kv")
    for T in range(3):
        dma_q(T)
    a.e("s_branch L_attn_p_done")
    a.label("L_attn_p_kv")
    for n in range(4):
        for g in range(2):
            dma_kv_quarter(n, 52, g * 4096, [qKV])
    a.label("L_attn_p_done")
    stamp(31)

    for T in range(10):
        a.c(f"Q projection step {T}")
        a.e("s_cmp_lt_u32 s40, 2")
        a.e(f"s_cbranch_scc0 L_attn_qw{T}")
        wait_q(qQ, {f"q{T}"})
        a.label(f"L_attn_qw{T}")
        a.e("s_barrier")
        stamp(1 + T)
        if 1 <= T <= 7:
            a.e("s_cmp_lt_u32 s40, 2")
            a.e(f"s_cbranch_scc0 L_attn_qi{T}")
            dma_q(T + 2)
            a.label(f"L_attn_qi{T}")
        elif T >= 8:
            for n in (2 * T - 12, 2 * T - 11):
                dma_kv_quarter(n, 50, 0, [qQ, qKV])
        a.e(f"v_add_u32 v{vVA[0]}, {qbuf(T)}, v{vWB}")
        a.e(f"v_add_u32 v{vKA[0]}, {qbuf(T) + SLOT}, v{vXB}")
        for dt in range(1, 4):
            a.e(f"v_xor_b32 v{vVA[dt]}, {dt << 6}, v{vVA[0]}")
            a.e(f"v_xor_b32 v{vKA[dt]}, {dt << 5}, v{vKA[0]}")
        xb = XB[T % 2]
        pre = [f"ds_read_b128 {vr(xb + 4*sp, 4)}, v{vKA[sp]}" for sp in range(4)]
        items = []
        for sp in range(4):
            for dt in range(4):
                reads = [(f"ds_read_b64_tr_b16 {{d}}, v{vVA[dt]} offset:{(16*sp + 4*sec)*256}", 2 * sec, 2) for sec in range(2)]
                acc = vr(O + 16 * dt, 16)
                cin = "0" if (T == 0 and sp == 0) else acc
                items.append((reads, f"{MFMA} {acc}, {{a}}, {vr(xb + 4*sp, 4)}, {cin}"))
        head, groups = mfma_stream(items, BUF, 5, pre)
        a.ext(merge(head, groups, []))
    wait_q(qKV, {"t0", "t1", "t2", "t3"})
    a.e("s_barrier")
    dma_kv_quarter(8, 50, 0, [qQ, qKV])
    a.c("convert Q to bf16 B-operand layout (AGPRs)")
    a.e("s_nop 3")
    for dt in range(4):
        for s in range(2):
            for j in range(4):
                src = O + 16 * dt + 8 * s + 2 * j
                a.e(f"v_cvt_pk_bf16_f32 v{P + j}, v{src}, v{src+1}")
            for j in range(4):
                a.e(f"v_accvgpr_write_b32 a{Q + 4*(2*dt+s) + j}, v{P + j}")
    for i in range(64):
        a.e(f"v_mov_b32 v{O+i}, 0")
    a.e(f"v_mov_b32 v{vM}, 0xff800000")
    a.e(f"v_mov_b32 v{vL}, 0")

    def k_addrs(sreg_or_imm):
        r = [f"v_add_u32 v{vKA[0]}, {sreg_or_imm}, v{vKB}"]
        for s in range(1, 8):
            r.append(f"v_xor_b32 v{vKA[s]}, {s << 5}, v{vKA[0]}")
        return r

    def v_addrs(sreg_or_imm):
        r = [f"v_add_u32 v{vVA[0]}, {sreg_or_imm}, v{vVB}"]
        for dt in range(1, 4):
            r.append(f"v_xor_b32 v{vVA[dt]}, {dt << 6}, v{vVA[0]}")
        return r

    def qk_items(S):
        items = []
        for kt in range(2):
            for s in range(8):
                reads = [(f"ds_read_b128 {{d}}, v{vKA[s]} offset:{kt*8192}", 0, 4)]
                acc = vr(S + 16 * kt, 16)
                cin = "0" if s == 0 else acc
                items.append((reads, f"{MFMA} {acc}, {{a}}, {ar(Q + 4*s, 4)}, {cin}"))
        return items

    def pv_items():
        items = []
        for ks in range(4):
            for dt in range(4):
                reads = [(f"ds_read_b64_tr_b16 {{d}}, v{vVA[dt]} offset:{(16*ks + 8*sec)*256}", 2 * sec, 2) for sec in range(2)]
                acc = vr(O + 16 * dt, 16)
                items.append((reads, f"{MFMA} {acc}, {{a}}, {vr(P + 4*ks, 4)}, {acc}"))
        return items

    def mx_valu(S):
        r = []
        def maxchain(dst, base):
            r.append(f"v_max3_f32 v{dst}, v{base}, v{base+1}, v{base+2}")
            for i in range(3, 15, 2):
                r.append(f"v_max3_f32 v{dst}, v{dst}, v{base+i}, v{base+i+1}")
            r.append(f"v_max_f32 v{dst}, v{dst}, v{base+15}")
        maxchain(t0, S)
        maxchain(t1, S + 16)
        r.append(f"v_max_f32 v{t0}, v{t0}, v{t1}")
        r.append(f"v_mov_b32 v{t1}, v{t0}")
        r.append("s_nop 1")
        r.append(f"v_permlane32_swap_b32 v{t0}, v{t1}")
        r.append("s_nop 0")
        r.append(f"v_max3_f32 v{t0}, v{t0}, v{t1}, v{vM}")
        r.append(f"v_sub_f32 v{t1}, v{vM}, v{t0}")
        r.append(f"v_mul_f32 v{vMC}, s49, v{t0}")
        r.append(f"v_mul_f32 v{t1}, s49, v{t1}")
        r.append(f"v_mov_b32 v{vM}, v{t0}")
        r.append(f"v_exp_f32 v{vAL}, v{t1}")
        for i in range(0, 32, 4):
            for k in range(4):
                r.append(f"v_fma_f32 v{S+i+k}, v{S+i+k}, s49, -v{vMC}")
            for k in range(4):
                r.append(f"v_exp_f32 v{S+i+k}, v{S+i+k}")
        return r

    def fin_valu(S):
        r = []
        for i in range(64):
            r.append(f"v_mul_f32 v{O+i}, v{O+i}, v{vAL}")
        for j in range(16):
            r.append(f"v_cvt_pk_bf16_f32 v{P+j}, v{S+2*j}, v{S+2*j+1}")
        r.append(f"v_mul_f32 v{vL}, v{vL}, v{vAL}")
        r.append(f"v_add_f32 v{t0}, v{S+0}, v{S+1}")
        r.append(f"v_add_f32 v{t1}, v{S+2}, v{S+3}")
        r.append(f"v_add_f32 v{t2}, v{S+4}, v{S+5}")
        r.append(f"v_add_f32 v{t3}, v{S+6}, v{S+7}")
        for i in range(8, 32, 4):
            r.append(f"v_add_f32 v{t0}, v{t0}, v{S+i}")
            r.append(f"v_add_f32 v{t1}, v{t1}, v{S+i+1}")
            r.append(f"v_add_f32 v{t2}, v{t2}, v{S+i+2}")
            r.append(f"v_add_f32 v{t3}, v{t3}, v{S+i+3}")
        r.append(f"v_add_f32 v{t0}, v{t0}, v{t1}")
        r.append(f"v_add_f32 v{t2}, v{t2}, v{t3}")
        r.append(f"v_add_f32 v{t0}, v{t0}, v{t2}")
        r.append(f"v_add_f32 v{vL}, v{vL}, v{t0}")
        return r

    a.c("pre-loop: QK(0), MX(0)")
    a.ext(k_addrs(0))
    head, groups = mfma_stream(qk_items(SS[0]), BUF, 8)
    a.ext(merge(head, groups, []))
    mx = mx_valu(SS[0])
    a.ext(mx[:8]); a.e("s_nop 4"); a.ext(mx[8:])
    a.e("s_mov_b32 s44, 0")
    a.e(f"s_mov_b32 s45, {1*SLOT}")
    a.e(f"s_mov_b32 s46, {2*SLOT}")
    a.e(f"s_add_u32 s57, s50, {9*SLOT}")
    a.e("s_mov_b32 s58, s50")
    a.e("s_add_u32 s54, s43, s50")
    a.e(f"s_add_u32 s56, s54, {4*16384}")
    a.e(f"s_add_u32 s54, s54, {5*16384}")

    def body(par, dma, waitn, last=False, stampit=True):
        Sc, Sn = SS[par], SS[1 - par]
        a.e(f"s_waitcnt vmcnt({waitn})")
        a.e("s_barrier")
        if STAMP and stampit:
            a.e("s_add_u32 m0, s44, 12")
            stamp("m0")
        if dma:
            a.e("s_cmp_le_u32 s44, 10")
            a.e(f"s_cselect_b32 s47, s54, {OOB:#x}")
            a.e("s_cmp_le_u32 s44, 11")
            a.e(f"s_cselect_b32 s48, s56, {OOB:#x}")
            a.e("s_mov_b32 m0, s57")
            a.e("s_nop 0")
            for j in range(4):
                a.e(f"buffer_load_dwordx4 v{vKD[j]}, s[24:27], s47 offen offset:{j*1024}{NT} lds")
            a.e("s_mov_b32 m0, s58")
            a.e("s_nop 0")
            for j in range(4):
                a.e(f"buffer_load_dwordx4 v{vVD}, s[28:31], s48 offen offset:{j*1024}{NT} lds")
        if opt.get("nocompute", 0):
            pass
        elif not last:
            a.ext(k_addrs("s45"))
            a.ext(v_addrs("s46"))
            items = qk_items(Sn) + pv_items()
            head, groups = mfma_stream(items, BUF, 6)
            a.ext(merge(head, groups[:16], fin_valu(Sc)))
            a.ext(merge([], groups[16:], mx_valu(Sn)))
        else:
            a.ext(v_addrs("s46"))
            head, groups = mfma_stream(pv_items(), BUF, 6)
            a.ext(head)
            a.ext(fin_valu(Sc))
            a.ext(merge([], groups, []))
        if not last:
            a.e("s_add_u32 s57, s45, s50")
            a.e("s_add_u32 s58, s46, s50")
            a.e("s_add_u32 s45, s45, 32768")
            a.e("s_cmp_ge_u32 s45, 163840")
            a.e("s_cselect_b32 s47, 163840, 0")
            a.e("s_sub_u32 s45, s45, s47")
            a.e("s_add_u32 s46, s46, 32768")
            a.e("s_cmp_ge_u32 s46, 163840")
            a.e("s_cselect_b32 s47, 163840, 0")
            a.e("s_sub_u32 s46, s46, s47")
            a.e("s_add_u32 s54, s54, 16384")
            a.e("s_add_u32 s56, s56, 16384")
            a.e("s_add_u32 s44, s44, 1")

    l0 = len(a.lines)
    a.label("L_attn_loop")
    body(0, True, 24)
    body(1, True, 24)
    a.e("s_cmp_lt_u32 s44, 14")
    a.e("s_cbranch_scc1 L_attn_loop")
    l1 = len(a.lines)
    check_hazards(a.lines[l0:l1] + a.lines[l0:l1], "attn loop x2")
    body(0, False, 24)
    body(1, False, 16, last=True)

    stamp(28)
    a.c("epilogue")
    a.e(f"v_mov_b32 v{t0}, v{vL}")
    a.e(f"v_mov_b32 v{t1}, v{vL}")
    a.e("s_nop 1")
    a.e(f"v_permlane32_swap_b32 v{t0}, v{t1}")
    a.e("s_nop 1")
    a.e(f"v_add_f32 v{t0}, v{t0}, v{t1}")
    a.e(f"v_rcp_f32 v{t0}, v{t0}")
    a.e(f"v_and_b32 v{t1}, 31, v{vLANE}")
    a.e(f"v_lshrrev_b32 v{t2}, 5, v{vLANE}")
    a.e(f"v_lshlrev_b32 v{t1}, 8, v{t1}")
    a.e(f"v_lshl_add_u32 v{t1}, v{t2}, 4, v{t1}")
    a.e("s_lshl_b32 s47, s55, 15")
    a.e("s_lshl_b32 s48, s40, 13")
    a.e("s_add_u32 s47, s47, s48")
    a.e("s_nop 4")
    k = 0
    for dt in range(4):
        for a2 in range(2):
            src = O + 16 * dt + 8 * a2
            d = SS[0] + 4 * k
            for i in range(8):
                a.e(f"v_mul_f32 v{src+i}, v{src+i}, v{t0}")
            for i in range(4):
                a.e(f"v_cvt_pk_bf16_f32 v{d+i}, v{src+2*i}, v{src+2*i+1}")
            a.e("s_nop 1")
            a.e(f"v_permlane32_swap_b32 v{d}, v{d+2}")
            a.e(f"v_permlane32_swap_b32 v{d+1}, v{d+3}")
            a.e("s_nop 1")
            a.e(f"buffer_store_dwordx4 {vr(d, 4)}, v{t1}, s[36:39], s47 offen offset:{(32*dt + 16*a2)*2}")
            k += 1
    if STAMP:
        a.e("s_waitcnt vmcnt(0)")
        stamp(29)
        a.e(f"s_cmp_eq_u32 s2, {STAMP - 1}")
        a.e("s_cbranch_scc0 L_attn_end")
        a.e(f"s_cmp_eq_u32 s40, {opt.get('stampw', 0)}")
        a.e("s_cbranch_scc0 L_attn_end")
        srd(a, 64, 16, 256)
        a.e(f"v_lshlrev_b32 v254, 2, v{vLANE}")
        a.e("buffer_store_dword v255, v254, s[64:67], 0 offen")
    a.label("L_attn_end")
    a.e("s_endpgm")
    check_hazards(a.lines, "attn")


PART_OFF = 8388608
PART_STRIDE = 1024 * 640 * 4
STG = 36864


def gen_oproj(a, opt):
    STAMP = opt.get("stamp2", 0)
    vLANE = 1
    vWD = [2, 3, 4, 5, 6]
    vOE, vOOd = 7, 8
    vRB, vOB = 9, 10
    vRA = 11
    vOA = [12, 13, 14, 15]
    vST = 16
    ACC = 32
    XB = [112, 128]
    BUF = [144 + 4 * i for i in range(8)]

    def stamp(idx):
        if not STAMP:
            return
        a.e("s_memtime s[60:61]")
        a.e("s_waitcnt lgkmcnt(0)")
        a.e(f"v_writelane_b32 v255, s60, {idx}")

    a.label("oproj_kernel")
    a.e("s_cmp_ge_u32 s2, 256")
    a.e("s_cbranch_scc1 L_oproj_end")
    if STAMP:
        a.e("v_mov_b32 v255, 0")
    stamp(0)
    a.e("s_load_dwordx2 s[4:5], s[0:1], 32")
    a.e("s_load_dwordx4 s[8:11], s[0:1], 48")
    a.e(f"v_and_b32 v{vLANE}, 63, v0")
    a.e("v_lshrrev_b32 v20, 6, v0")
    a.e("s_nop 0")
    a.e("v_readfirstlane_b32 s40, v20")
    a.e("s_and_b32 s41, s2, 7")
    a.e("s_lshr_b32 s42, s2, 3")
    a.e("s_and_b32 s43, s42, 3")
    a.e("s_lshr_b32 s42, s42, 2")
    a.e("s_movk_i32 s44, 3277")
    a.e("s_movk_i32 s45, 1280")
    a.e("s_lshl_b32 s46, s40, 4")
    for j in range(5):
        a.e(f"v_add_u32 v20, {64*j}, v{vLANE}")
        a.e("v_mul_lo_u32 v21, v20, s44")
        a.e("v_lshrrev_b32 v21, 16, v21")
        a.e("v_mul_u32_u24 v22, 20, v21")
        a.e("v_sub_u32 v22, v20, v22")
        a.e("v_add_u32 v21, s46, v21")
        a.e("v_mul_lo_u32 v21, v21, s45")
        a.e(f"v_lshl_add_u32 v{vWD[j]}, v22, 4, v21")
    a.e(f"v_lshrrev_b32 v20, 3, v{vLANE}")
    a.e(f"v_lshrrev_b32 v21, 4, v{vLANE}")
    a.e(f"v_and_b32 v22, 7, v{vLANE}")
    a.e("v_xor_b32 v22, v22, v21")
    a.e("v_lshlrev_b32 v22, 4, v22")
    a.e(f"v_lshl_add_u32 v{vOE}, v20, 8, v22")
    a.e(f"v_xor_b32 v{vOOd}, 64, v{vOE}")
    a.e(f"v_and_b32 v20, 31, v{vLANE}")
    a.e(f"v_lshrrev_b32 v21, 5, v{vLANE}")
    a.e("v_lshrrev_b32 v22, 1, v20")
    a.e("v_and_b32 v22, 7, v22")
    a.e("v_xor_b32 v22, v21, v22")
    a.e("v_lshlrev_b32 v22, 4, v22")
    a.e("v_lshl_add_u32 v22, v20, 7, v22")
    a.e("s_lshl_b32 s50, s40, 12")
    a.e(f"v_add_u32 v{vOB}, s50, v22")
    a.e("s_lshl_b32 s46, s42, 7")
    a.e("s_lshl_b32 s47, s40, 5")
    a.e("s_add_u32 s46, s46, s47")
    a.e("v_add_u32 v22, s46, v20")
    a.e("s_movk_i32 s46, 2560")
    a.e("v_mul_lo_u32 v22, v22, s46")
    a.e(f"v_lshl_add_u32 v{vST}, v21, 4, v22")
    a.e(f"v_and_b32 v22, 15, v{vLANE}")
    a.e("v_lshrrev_b32 v23, 2, v22")
    a.e("v_and_b32 v22, 3, v22")
    a.e("v_lshl_add_u32 v23, v21, 3, v23")
    a.e("v_mul_u32_u24 v23, 320, v23")
    a.e(f"v_lshrrev_b32 v24, 4, v{vLANE}")
    a.e("v_and_b32 v24, 1, v24")
    a.e("v_lshl_add_u32 v23, v24, 5, v23")
    a.e(f"v_lshl_add_u32 v{vRB}, v22, 3, v23")
    a.e("s_waitcnt lgkmcnt(0)")
    srd(a, 20, 4, 4096 * 640 * 2)
    srd(a, 24, 10, 268435456)
    a.e("s_mul_i32 s47, s41, 163840")
    a.e("s_mul_i32 s48, s43, 320")
    a.e("s_add_u32 s47, s47, s48")
    a.e("s_lshl_b32 s48, s42, 5")
    a.e("s_add_u32 s48, s48, s41")
    a.e("s_lshl_b32 s48, s48, 15")
    a.e("s_lshl_b32 s51, s40, 13")
    a.e("s_add_u32 s48, s48, s51")
    a.e("s_mul_i32 s49, s40, 5120")

    def dma(T):
        u, half = T // 2, T % 2
        buf = (T % 4) * STG
        a.e(f"s_add_u32 s52, s47, {(8*u*128 + 64*half)*1280}")
        for j in range(5):
            a.e(f"s_add_u32 s51, s49, {buf + j*1024}")
            a.e("s_mov_b32 m0, s51")
            a.e("s_nop 0")
            a.vm(f"buffer_load_dwordx4 v{vWD[j]}, s[20:23], s52 offen lds", f"w{T}")
        a.e(f"s_add_u32 s51, s50, {buf + 20480}")
        a.e("s_mov_b32 m0, s51")
        a.e(f"s_add_u32 s52, s48, {8*u*32768 + half*128}")
        for j in range(4):
            a.vm(f"buffer_load_dwordx4 v{vOOd if j & 1 else vOE}, s[24:27], s52 offen offset:{j*1024} lds", f"w{T}")
            if j < 3:
                a.e("s_add_u32 s52, s52, 1024")

    for T in range(4):
        dma(T)
    stamp(31)
    for T in range(8):
        a.c(f"step {T}")
        a.wait_vm({f"w{T}"})
        a.e("s_barrier")
        stamp(1 + T)
        if 1 <= T <= 4:
            dma(T + 3)
        buf = (T % 4) * STG
        a.e(f"v_add_u32 v{vRA}, {buf}, v{vRB}")
        a.e(f"v_add_u32 v{vOA[0]}, {buf + 20480}, v{vOB}")
        for sp in range(1, 4):
            a.e(f"v_xor_b32 v{vOA[sp]}, {sp << 5}, v{vOA[0]}")
        xb = XB[T % 2]
        pre = [f"ds_read_b128 {vr(xb + 4*sp, 4)}, v{vOA[sp]}" for sp in range(4)]
        items = []
        for sp in range(4):
            for ct in range(5):
                reads = [(f"ds_read_b64_tr_b16 {{d}}, v{vRA} offset:{(16*sp + 4*sec)*320 + ct*64}", 2 * sec, 2) for sec in range(2)]
                acc = vr(ACC + 16 * ct, 16)
                cin = "0" if (T == 0 and sp == 0) else acc
                items.append((reads, f"{MFMA} {acc}, {{a}}, {vr(xb + 4*sp, 4)}, {cin}"))
        head, groups = mfma_stream(items, BUF, 5, pre)
        a.ext(merge(head, groups, []))
    stamp(28)
    a.e(f"s_mul_i32 s50, s41, {PART_STRIDE}")
    a.e("s_mul_i32 s51, s43, 640")
    a.e("s_add_u32 s50, s50, s51")
    a.e(f"s_add_u32 s50, s50, {PART_OFF}")
    a.e("s_nop 7")
    a.e("s_nop 3")
    for ct in range(5):
        for g in range(4):
            a.e(f"buffer_store_dwordx4 {vr(ACC + 16*ct + 4*g, 4)}, v{vST}, s[24:27], s50 offen offset:{128*ct + 32*g}")
    if STAMP:
        a.e("s_waitcnt vmcnt(0)")
        stamp(29)
        a.e(f"s_cmp_eq_u32 s2, {STAMP - 1}")
        a.e("s_cbranch_scc0 L_oproj_end")
        a.e("s_cmp_eq_u32 s40, 0")
        a.e("s_cbranch_scc0 L_oproj_end")
        srd(a, 64, 8, 256)
        a.e(f"v_lshlrev_b32 v254, 2, v{vLANE}")
        a.e("buffer_store_dword v255, v254, s[64:67], 0 offen")
    a.label("L_oproj_end")
    a.e("s_endpgm")
    check_hazards(a.lines, "oproj")


def gen_reduce(a, opt):
    a.label("reduce_kernel")
    a.e("s_cmp_ge_u32 s2, 320")
    a.e("s_cbranch_scc1 L_reduce_end")
    a.e("s_load_dwordx2 s[4:5], s[0:1], 40")
    a.e("s_load_dwordx2 s[6:7], s[0:1], 56")
    a.e("s_lshl_b32 s3, s2, 8")
    a.e("v_add_u32 v1, s3, v0")
    a.e("v_lshlrev_b32 v2, 5, v1")
    a.e("v_lshlrev_b32 v3, 4, v1")
    a.e("s_waitcnt lgkmcnt(0)")
    srd(a, 20, 4, 1024 * 640 * 2)
    srd(a, 24, 6, 268435456)
    for ks in range(8):
        a.e(f"s_mov_b32 s30, {PART_OFF + ks*PART_STRIDE}")
        a.e(f"buffer_load_dwordx4 {vr(8 + 8*ks, 4)}, v2, s[24:27], s30 offen")
        a.e(f"buffer_load_dwordx4 {vr(12 + 8*ks, 4)}, v2, s[24:27], s30 offen offset:16")
    for ks in range(1, 8):
        a.e(f"s_waitcnt vmcnt({2*(7-ks)})")
        for i in range(8):
            a.e(f"v_add_f32 v{8+i}, v{8+i}, v{8+8*ks+i}")
    for j in range(4):
        a.e(f"v_cvt_pk_bf16_f32 v{4+j}, v{8+2*j}, v{9+2*j}")
    a.e("buffer_store_dwordx4 v[4:7], v3, s[20:23], 0 offen")
    a.label("L_reduce_end")
    a.e("s_endpgm")


def kd(name, vgpr, acc, sgpr=102):
    return f""".amdhsa_kernel {name}
  .amdhsa_next_free_vgpr {vgpr}
  .amdhsa_next_free_sgpr {sgpr}
  .amdhsa_accum_offset {acc}
  .amdhsa_group_segment_fixed_size 0
  .amdhsa_kernarg_size 64
  .amdhsa_user_sgpr_count 2
  .amdhsa_user_sgpr_kernarg_segment_ptr 1
  .amdhsa_system_sgpr_workgroup_id_x 1
.end_amdhsa_kernel
"""


def main():
    out = sys.argv[1] if len(sys.argv) > 1 else "standalone__mha_block_cached__near_ridge.s"
    opt = {}
    for kv in sys.argv[2:]:
        k, v = kv.split("=")
        opt[k] = int(v)
    txt = HEADER
    txt += "; @launch kernel=attn_kernel grid=(256,1,1) block=(256,1,1) lds=163840\n"
    txt += f"; @launch kernel=oproj_kernel grid=(256,1,1) block=(256,1,1) lds={4*STG}\n"
    txt += "; @launch kernel=reduce_kernel grid=(320,1,1) block=(256,1,1) lds=0\n"
    txt += '.amdgcn_target "amdgcn-amd-amdhsa--gfx950"\n.text\n'
    for name, fn in (("attn_kernel", gen_attn), ("oproj_kernel", gen_oproj), ("reduce_kernel", gen_reduce)):
        a = Asm()
        fn(a, opt)
        txt += f".globl {name}\n.p2align 8\n.type {name},@function\n" + a.text()
    txt += '.section .rodata,"a"\n'
    for name, v, acc in (("attn_kernel", 288, 256), ("oproj_kernel", 256, 256), ("reduce_kernel", 72, 72)):
        txt += ".p2align 6\n" + kd(name, v, acc)
    open(out, "w").write(txt)


if __name__ == "__main__":
    main()
```

```python
import sys, math, os
sys.path.insert(0, os.path.dirname(os.path.abspath(__file__)))
from asmlib import *

HEADER = """; Kernarg layout for this problem (64 bytes, ptrs only, base s[0:1]):
"""

MFMA = "v_mfma_f32_32x32x16_bf16"
SLOT = 16384
OOB = 0x40000000


def srd(a, d, p, n):
    a.e(f"s_mov_b32 s{d}, s{p}")
    a.e(f"s_mov_b32 s{d+1}, s{p+1}")
    a.e(f"s_mov_b32 s{d+2}, {n}")
    a.e(f"s_mov_b32 s{d+3}, 0x00020000")


def gen_attn(a, opt):
    NT = " nt" if opt.get("nt", 1) else ""
    STAMP = opt.get("stamp", 0)
    SCALE = (128 ** -0.5) * math.log2(math.e)
    vLANE = 1
    vKD = [2, 3, 4, 5]
    vVD, vWD, vXE, vXOd = 6, 7, 8, 9
    vKB, vVB, vWB, vXB = 10, 11, 12, 13
    vKA = list(range(14, 22))
    vVA = list(range(22, 26))
    vM, vL, vAL, vMC = 26, 27, 28, 29
    t0, t1, t2, t3 = 30, 31, 240, 241
    O = 32
    SS = [96, 128]
    P = 160
    BUF = [176 + 4 * i for i in range(16)]
    XB = [96, 112]
    Q = 0

    def stamp(idx):
        if not STAMP:
            return
        a.e("s_memtime s[60:61]")
        a.e("s_waitcnt lgkmcnt(0)")
        a.e(f"v_writelane_b32 v255, s60, {idx}")

    a.label("attn_kernel")
    a.e("s_cmp_ge_u32 s2, 256")
    a.e("s_cbranch_scc1 L_attn_end")
    if STAMP:
        a.e("v_mov_b32 v255, 0")
    stamp(0)
    a.e("s_load_dwordx8 s[4:11], s[0:1], 0")
    a.e("s_load_dwordx8 s[12:19], s[0:1], 32")
    a.e(f"v_and_b32 v{vLANE}, 63, v0")
    a.e("v_lshrrev_b32 v242, 6, v0")
    a.e("s_nop 0")
    a.e("v_readfirstlane_b32 s40, v242")
    a.e("s_and_b32 s41, s2, 31")
    a.e("s_lshr_b32 s42, s2, 5")
    a.e("s_mov_b32 s55, s2")
    a.e("s_lshl_b32 s43, s55, 18")
    a.e(f"s_mov_b32 s49, {f32bits(SCALE):#x}")
    a.e("s_lshl_b32 s53, s41, 8")
    a.e("s_mul_i32 s59, s42, 163840")
    a.e("s_lshl_b32 s50, s40, 12")
    a.e(f"v_lshrrev_b32 v242, 4, v{vLANE}")
    a.e(f"v_and_b32 v243, 15, v{vLANE}")
    a.e(f"v_lshrrev_b32 v244, 5, v{vLANE}")
    a.e(f"v_and_b32 v245, 31, v{vLANE}")
    a.e("v_xor_b32 v246, v243, v242")
    a.e("v_lshlrev_b32 v246, 4, v246")
    a.e(f"v_lshl_add_u32 v{vKD[0]}, v242, 8, v246")
    for j in range(1, 4):
        a.e(f"v_xor_b32 v{vKD[j]}, {j << 6}, v{vKD[0]}")
    a.e("v_lshlrev_b32 v246, 2, v242")
    a.e("v_xor_b32 v246, v243, v246")
    a.e("v_lshlrev_b32 v246, 4, v246")
    a.e(f"v_lshl_add_u32 v{vVD}, v242, 8, v246")
    a.e(f"v_lshl_add_u32 v{vWD}, v242, 13, v246")
    a.e(f"v_lshrrev_b32 v246, 3, v{vLANE}")
    a.e("v_mul_u32_u24 v246, 1280, v246")
    a.e(f"v_and_b32 v247, 7, v{vLANE}")
    a.e("v_xor_b32 v247, v247, v242")
    a.e(f"v_lshl_add_u32 v{vXE}, v247, 4, v246")
    a.e(f"v_xor_b32 v{vXOd}, 64, v{vXE}")
    a.e("v_xor_b32 v246, v244, v243")
    a.e("v_lshlrev_b32 v246, 4, v246")
    a.e(f"v_lshl_add_u32 v{vKB}, v245, 8, v246")
    a.e("v_lshrrev_b32 v246, 1, v245")
    a.e("v_and_b32 v246, 7, v246")
    a.e("v_xor_b32 v246, v244, v246")
    a.e("v_lshlrev_b32 v246, 4, v246")
    a.e("v_lshl_add_u32 v246, v245, 7, v246")
    a.e(f"v_add_u32 v{vXB}, s50, v246")
    a.e("v_lshrrev_b32 v246, 2, v243")
    a.e("v_and_b32 v247, 3, v243")
    a.e("v_and_b32 v248, 1, v242")
    a.e("v_lshlrev_b32 v249, 6, v246")
    a.e("v_lshl_add_u32 v249, v248, 5, v249")
    a.e("v_lshl_add_u32 v250, v244, 2, v246")
    a.e("v_lshl_add_u32 v250, v250, 8, v249")
    a.e(f"v_lshl_add_u32 v{vVB}, v247, 3, v250")
    a.e("v_lshl_add_u32 v250, v244, 3, v246")
    a.e("v_lshl_add_u32 v250, v250, 8, v249")
    a.e("v_and_b32 v251, 1, v247")
    a.e("v_lshlrev_b32 v251, 1, v251")
    a.e("v_lshrrev_b32 v252, 1, v247")
    a.e("v_or_b32 v251, v251, v252")
    a.e(f"v_lshl_add_u32 v{vWB}, v251, 3, v250")
    a.e("s_waitcnt lgkmcnt(0)")
    srd(a, 20, 4, 8 * 128 * 640 * 2)
    srd(a, 24, 6, 67108864)
    srd(a, 28, 8, 67108864)
    srd(a, 32, 10, 640 * 4096 * 2)
    srd(a, 36, 18, 268435456)
    a.e("s_and_b32 s51, s40, 1")
    a.e("s_lshl_b32 s52, s51, 13")

    ROT = opt.get("rot", 1)
    a.e("s_lshr_b32 s62, s41, 3")
    a.e("s_mul_i32 s62, s62, 3")
    a.e("s_add_u32 s62, s62, s42")
    a.e("s_cmp_ge_u32 s62, 10")
    a.e("s_cselect_b32 s47, 10, 0")
    a.e("s_sub_u32 s62, s62, s47")
    if not ROT:
        a.e("s_mov_b32 s62, 0")
    qQ, qKV = [], []

    def tile_kind(n):
        if n == 0:
            return ("k", 0)
        if n % 2:
            return ("k", (n + 1) // 2)
        return ("v", n // 2 - 1)

    def dma_kv_quarter(n, qsreg, qadd, queues):
        kind, idx = tile_kind(n)
        a.e(f"s_add_u32 s47, s{qsreg}, {(n % 10) * SLOT + qadd}")
        a.e("s_mov_b32 m0, s47")
        a.e(f"s_add_u32 s48, s{qsreg}, {idx * 16384 + qadd}")
        a.e("s_add_u32 s48, s48, s43")
        for j in range(4):
            if kind == "k":
                a.e(f"buffer_load_dwordx4 v{vKD[j]}, s[24:27], s48 offen offset:{j*1024}{NT} lds")
            else:
                a.e(f"buffer_load_dwordx4 v{vVD}, s[28:31], s48 offen offset:{j*1024}{NT} lds")
            for q in queues:
                q.append(f"t{n}")

    def qbuf(i):
        return (4 + 2 * ((i + 2) % 3)) * SLOT

    def dma_q(T):
        base = qbuf(T)
        a.e("s_lshl_b32 s63, s62, 19")
        a.e("s_lshl_b32 s64, s62, 7")
        a.e("s_add_u32 s62, s62, 1")
        a.e("s_cmp_eq_u32 s62, 10")
        a.e("s_cselect_b32 s62, 0, s62")
        for g in range(2):
            a.e(f"s_add_u32 s47, s52, {base + g * 4096}")
            a.e("s_mov_b32 m0, s47")
            a.e("s_lshl_b32 s48, s51, 18")
            a.e("s_add_u32 s48, s48, s53")
            a.e("s_add_u32 s48, s48, s63")
            a.e(f"s_add_u32 s48, s48, {(16 * g) * 8192}")
            for j in range(4):
                a.e(f"buffer_load_dwordx4 v{vWD}, s[32:35], s48 offen offset:{j*1024} lds")
                qQ.append(f"q{T}")
                if j < 3:
                    a.e(f"s_add_u32 s48, s48, {32768 - 1024}")
        for g in range(2):
            a.e(f"s_add_u32 s47, s52, {base + SLOT + g * 4096}")
            a.e("s_mov_b32 m0, s47")
            a.e("s_mul_i32 s48, s51, 81920")
            a.e("s_add_u32 s48, s48, s59")
            a.e("s_add_u32 s48, s48, s64")
            a.e(f"s_add_u32 s48, s48, {32 * g * 1280}")
            for j in range(4):
                a.e(f"buffer_load_dwordx4 v{vXOd if j & 1 else vXE}, s[20:23], s48 offen offset:{j*1024} lds")
                qQ.append(f"q{T}")
                if j < 3:
                    a.e(f"s_add_u32 s48, s48, {10240 - 1024}")

    def wait_q(q, tags):
        last = max([i for i, t in enumerate(q) if t in tags], default=-1)
        if last < 0:
            return
        n = len(q) - 1 - last
        assert n <= 63
        a.e(f"s_waitcnt vmcnt({n})")
        del q[:last + 1]

    KVSTEP = {0: -1, 1: 1, 2: 3, 3: 5}
    if opt.get("kvearly", 0):
        KVSTEP = {0: -1, 1: 0, 2: 1, 3: 2}
    a.c("prologue loads (role split: waves 0,1 = Q stages, waves 2,3 = K/V tiles)")
    a.e("s_cmp_lt_u32 s40, 2")
    a.e("s_cbranch_scc0 L_attn_p_kv")
    for T in range(2):
        dma_q(T)
    a.e("s_branch L_attn_p_done")
    a.label("L_attn_p_kv")
    for n in range(4):
        if KVSTEP[n] == -1:
            for g in range(2):
                dma_kv_quarter(n, 52, g * 4096, [qKV])
    a.label("L_attn_p_done")
    stamp(31)

    for T in range(10):
        a.c(f"Q projection step {T}")
        a.e("s_cmp_lt_u32 s40, 2")
        a.e(f"s_cbranch_scc0 L_attn_qw{T}")
        wait_q(qQ, {f"q{T}"})
        a.label(f"L_attn_qw{T}")
        a.e("s_barrier")
        stamp(1 + T)
        if T <= 7:
            a.e("s_cmp_lt_u32 s40, 2")
            a.e(f"s_cbranch_scc0 L_attn_qi{T}")
            dma_q(T + 2)
            a.e(f"s_branch L_attn_qj{T}")
            a.label(f"L_attn_qi{T}")
            for n in range(4):
                if KVSTEP[n] == T:
                    for g in range(2):
                        dma_kv_quarter(n, 52, g * 4096, [qKV])
            a.label(f"L_attn_qj{T}")
        elif T >= 8:
            for n in (2 * T - 12, 2 * T - 11):
                dma_kv_quarter(n, 50, 0, [qQ, qKV])
        a.e(f"v_add_u32 v{vVA[0]}, {qbuf(T)}, v{vWB}")
        a.e(f"v_add_u32 v{vKA[0]}, {qbuf(T) + SLOT}, v{vXB}")
        for dt in range(1, 4):
            a.e(f"v_xor_b32 v{vVA[dt]}, {dt << 6}, v{vVA[0]}")
            a.e(f"v_xor_b32 v{vKA[dt]}, {dt << 5}, v{vKA[0]}")
        xb = XB[T % 2]
        pre = [f"ds_read_b128 {vr(xb + 4*sp, 4)}, v{vKA[sp]}" for sp in range(4)]
        items = []
        for sp in range(4):
            for dt in range(4):
                reads = [(f"ds_read_b64_tr_b16 {{d}}, v{vVA[dt]} offset:{(16*sp + 4*sec)*256}", 2 * sec, 2) for sec in range(2)]
                acc = vr(O + 16 * dt, 16)
                cin = "0" if (T == 0 and sp == 0) else acc
                items.append((reads, f"{MFMA} {acc}, {{a}}, {vr(xb + 4*sp, 4)}, {cin}"))
        head, groups = mfma_stream(items, BUF, 5, pre)
        a.ext(merge(head, groups, []))
    wait_q(qKV, {"t0", "t1", "t2", "t3"})
    a.e("s_barrier")
    dma_kv_quarter(8, 50, 0, [qQ, qKV])
    a.c("convert Q to bf16 B-operand layout (AGPRs)")
    a.e("s_nop 3")
    for dt in range(4):
        for s in range(2):
            for j in range(4):
                src = O + 16 * dt + 8 * s + 2 * j
                a.e(f"v_cvt_pk_bf16_f32 v{P + j}, v{src}, v{src+1}")
            for j in range(4):
                a.e(f"v_accvgpr_write_b32 a{Q + 4*(2*dt+s) + j}, v{P + j}")
    for i in range(64):
        a.e(f"v_mov_b32 v{O+i}, 0")
    a.e(f"v_mov_b32 v{vM}, 0xff800000")
    a.e(f"v_mov_b32 v{vL}, 0")

    def k_addrs(sreg_or_imm):
        r = [f"v_add_u32 v{vKA[0]}, {sreg_or_imm}, v{vKB}"]
        for s in range(1, 8):
            r.append(f"v_xor_b32 v{vKA[s]}, {s << 5}, v{vKA[0]}")
        return r

    def v_addrs(sreg_or_imm):
        r = [f"v_add_u32 v{vVA[0]}, {sreg_or_imm}, v{vVB}"]
        for dt in range(1, 4):
            r.append(f"v_xor_b32 v{vVA[dt]}, {dt << 6}, v{vVA[0]}")
        return r

    def qk_items(S):
        items = []
        for kt in range(2):
            for s in range(8):
                reads = [(f"ds_read_b128 {{d}}, v{vKA[s]} offset:{kt*8192}", 0, 4)]
                acc = vr(S + 16 * kt, 16)
                cin = "0" if s == 0 else acc
                items.append((reads, f"{MFMA} {acc}, {{a}}, {ar(Q + 4*s, 4)}, {cin}"))
        return items

    def pv_items():
        items = []
        for ks in range(4):
            for dt in range(4):
                reads = [(f"ds_read_b64_tr_b16 {{d}}, v{vVA[dt]} offset:{(16*ks + 8*sec)*256}", 2 * sec, 2) for sec in range(2)]
                acc = vr(O + 16 * dt, 16)
                items.append((reads, f"{MFMA} {acc}, {{a}}, {vr(P + 4*ks, 4)}, {acc}"))
        return items

    def mx_valu(S):
        r = []
        def maxchain(dst, base):
            r.append(f"v_max3_f32 v{dst}, v{base}, v{base+1}, v{base+2}")
            for i in range(3, 15, 2):
                r.append(f"v_max3_f32 v{dst}, v{dst}, v{base+i}, v{base+i+1}")
            r.append(f"v_max_f32 v{dst}, v{dst}, v{base+15}")
        maxchain(t0, S)
        maxchain(t1, S + 16)
        r.append(f"v_max_f32 v{t0}, v{t0}, v{t1}")
        r.append(f"v_mov_b32 v{t1}, v{t0}")
        r.append("s_nop 1")
        r.append(f"v_permlane32_swap_b32 v{t0}, v{t1}")
        r.append("s_nop 0")
        r.append(f"v_max3_f32 v{t0}, v{t0}, v{t1}, v{vM}")
        r.append(f"v_sub_f32 v{t1}, v{vM}, v{t0}")
        r.append(f"v_mul_f32 v{vMC}, s49, v{t0}")
        r.append(f"v_mul_f32 v{t1}, s49, v{t1}")
        r.append(f"v_mov_b32 v{vM}, v{t0}")
        r.append(f"v_exp_f32 v{vAL}, v{t1}")
        for i in range(0, 32, 4):
            for k in range(4):
                r.append(f"v_fma_f32 v{S+i+k}, v{S+i+k}, s49, -v{vMC}")
            for k in range(4):
                r.append(f"v_exp_f32 v{S+i+k}, v{S+i+k}")
        return r

    def fin_valu(S):
        r = []
        for i in range(64):
            r.append(f"v_mul_f32 v{O+i}, v{O+i}, v{vAL}")
        for j in range(16):
            r.append(f"v_cvt_pk_bf16_f32 v{P+j}, v{S+2*j}, v{S+2*j+1}")
        r.append(f"v_mul_f32 v{vL}, v{vL}, v{vAL}")
        r.append(f"v_add_f32 v{t0}, v{S+0}, v{S+1}")
        r.append(f"v_add_f32 v{t1}, v{S+2}, v{S+3}")
        r.append(f"v_add_f32 v{t2}, v{S+4}, v{S+5}")
        r.append(f"v_add_f32 v{t3}, v{S+6}, v{S+7}")
        for i in range(8, 32, 4):
            r.append(f"v_add_f32 v{t0}, v{t0}, v{S+i}")
            r.append(f"v_add_f32 v{t1}, v{t1}, v{S+i+1}")
            r.append(f"v_add_f32 v{t2}, v{t2}, v{S+i+2}")
            r.append(f"v_add_f32 v{t3}, v{t3}, v{S+i+3}")
        r.append(f"v_add_f32 v{t0}, v{t0}, v{t1}")
        r.append(f"v_add_f32 v{t2}, v{t2}, v{t3}")
        r.append(f"v_add_f32 v{t0}, v{t0}, v{t2}")
        r.append(f"v_add_f32 v{vL}, v{vL}, v{t0}")
        return r

    a.c("pre-loop: QK(0), MX(0)")
    a.ext(k_addrs(0))
    head, groups = mfma_stream(qk_items(SS[0]), BUF, 8)
    a.ext(merge(head, groups, []))
    mx = mx_valu(SS[0])
    a.ext(mx[:8]); a.e("s_nop 4"); a.ext(mx[8:])
    a.e("s_mov_b32 s44, 0")
    a.e(f"s_mov_b32 s45, {1*SLOT}")
    a.e(f"s_mov_b32 s46, {2*SLOT}")
    a.e(f"s_add_u32 s57, s50, {9*SLOT}")
    a.e("s_mov_b32 s58, s50")
    a.e("s_add_u32 s54, s43, s50")
    a.e(f"s_add_u32 s56, s54, {4*16384}")
    a.e(f"s_add_u32 s54, s54, {5*16384}")

    def body(par, dma, waitn, last=False, stampit=True):
        Sc, Sn = SS[par], SS[1 - par]
        a.e(f"s_waitcnt vmcnt({waitn})")
        a.e("s_barrier")
        if STAMP and stampit:
            a.e("s_add_u32 m0, s44, 12")
            stamp("m0")
        if dma:
            a.e("s_cmp_le_u32 s44, 10")
            a.e(f"s_cselect_b32 s47, s54, {OOB:#x}")
            a.e("s_cmp_le_u32 s44, 11")
            a.e(f"s_cselect_b32 s48, s56, {OOB:#x}")
            a.e("s_mov_b32 m0, s57")
            a.e("s_nop 0")
            for j in range(4):
                a.e(f"buffer_load_dwordx4 v{vKD[j]}, s[24:27], s47 offen offset:{j*1024}{NT} lds")
            a.e("s_mov_b32 m0, s58")
            a.e("s_nop 0")
            for j in range(4):
                a.e(f"buffer_load_dwordx4 v{vVD}, s[28:31], s48 offen offset:{j*1024}{NT} lds")
        if opt.get("nocompute", 0):
            pass
        elif not last:
            a.ext(k_addrs("s45"))
            a.ext(v_addrs("s46"))
            items = qk_items(Sn) + pv_items()
            head, groups = mfma_stream(items, BUF, 6)
            a.ext(merge(head, groups[:16], fin_valu(Sc)))
            a.ext(merge([], groups[16:], mx_valu(Sn)))
        else:
            a.ext(v_addrs("s46"))
            head, groups = mfma_stream(pv_items(), BUF, 6)
            a.ext(head)
            a.ext(fin_valu(Sc))
            a.ext(merge([], groups, []))
        if not last:
            a.e("s_add_u32 s57, s45, s50")
            a.e("s_add_u32 s58, s46, s50")
            a.e("s_add_u32 s45, s45, 32768")
            a.e("s_cmp_ge_u32 s45, 163840")
            a.e("s_cselect_b32 s47, 163840, 0")
            a.e("s_sub_u32 s45, s45, s47")
            a.e("s_add_u32 s46, s46, 32768")
            a.e("s_cmp_ge_u32 s46, 163840")
            a.e("s_cselect_b32 s47, 163840, 0")
            a.e("s_sub_u32 s46, s46, s47")
            a.e("s_add_u32 s54, s54, 16384")
            a.e("s_add_u32 s56, s56, 16384")
            a.e("s_add_u32 s44, s44, 1")

    l0 = len(a.lines)
    a.label("L_attn_loop")
    body(0, True, 24)
    body(1, True, 24)
    a.e("s_cmp_lt_u32 s44, 14")
    a.e("s_cbranch_scc1 L_attn_loop")
    l1 = len(a.lines)
    check_hazards(a.lines[l0:l1] + a.lines[l0:l1], "attn loop x2")
    body(0, False, 24)
    body(1, False, 16, last=True)

    stamp(28)
    a.c("epilogue")
    a.e(f"v_mov_b32 v{t0}, v{vL}")
    a.e(f"v_mov_b32 v{t1}, v{vL}")
    a.e("s_nop 1")
    a.e(f"v_permlane32_swap_b32 v{t0}, v{t1}")
    a.e("s_nop 1")
    a.e(f"v_add_f32 v{t0}, v{t0}, v{t1}")
    a.e(f"v_rcp_f32 v{t0}, v{t0}")
    a.e(f"v_lshlrev_b32 v{t1}, 4, v{vLANE}")
    a.e("s_lshl_b32 s47, s55, 15")
    a.e("s_lshl_b32 s48, s40, 13")
    a.e("s_add_u32 s47, s47, s48")
    a.e("s_nop 4")
    k = 0
    for dt in range(4):
        for a2 in range(2):
            src = O + 16 * dt + 8 * a2
            d = SS[0] + 4 * k
            for i in range(8):
                a.e(f"v_mul_f32 v{src+i}, v{src+i}, v{t0}")
            for i in range(4):
                a.e(f"v_cvt_pk_bf16_f32 v{d+i}, v{src+2*i}, v{src+2*i+1}")
            a.e("s_nop 1")
            a.e(f"v_permlane32_swap_b32 v{d}, v{d+2}")
            a.e(f"v_permlane32_swap_b32 v{d+1}, v{d+3}")
            a.e("s_nop 1")
            a.e(f"buffer_store_dwordx4 {vr(d, 4)}, v{t1}, s[36:39], s47 offen offset:{(k % 4) * 1024}")
            if k == 3:
                a.e("s_add_u32 s47, s47, 4096")
            k += 1
    if STAMP:
        a.e("s_waitcnt vmcnt(0)")
        stamp(29)
        a.e(f"s_cmp_eq_u32 s2, {STAMP - 1}")
        a.e("s_cbranch_scc0 L_attn_end")
        a.e(f"s_cmp_eq_u32 s40, {opt.get('stampw', 0)}")
        a.e("s_cbranch_scc0 L_attn_end")
        srd(a, 68, 16, 256)
        a.e(f"v_lshlrev_b32 v254, 2, v{vLANE}")
        a.e("buffer_store_dword v255, v254, s[68:71], 0 offen")
    a.label("L_attn_end")
    a.e("s_endpgm")
    check_hazards(a.lines, "attn")


PART_OFF = 8388608
PART_STRIDE = 1024 * 640 * 4
WT = 20480


def gen_oproj(a, opt):
    STAMP = opt.get("stamp2", 0)
    AHEAD = opt.get("ahead2", 2)
    vLANE = 1
    vWD = [2, 3, 4, 5, 6]
    vL16 = 7
    vRB = 9
    vRA = 11
    ACC = 32
    XB = 112
    BUF = [240, 244, 248, 252, 12, 16, 20, 24]

    def stamp(idx):
        if not STAMP:
            return
        a.e("s_memtime s[60:61]")
        a.e("s_waitcnt lgkmcnt(0)")
        a.e(f"v_writelane_b32 v28, s60, {idx}")

    a.label("oproj_kernel")
    a.e("s_cmp_ge_u32 s2, 256")
    a.e("s_cbranch_scc1 L_oproj_end")
    if STAMP:
        a.e("v_mov_b32 v28, 0")
    stamp(0)
    a.e("s_load_dwordx2 s[4:5], s[0:1], 32")
    a.e("s_load_dwordx4 s[8:11], s[0:1], 48")
    a.e(f"v_and_b32 v{vLANE}, 63, v0")
    a.e("v_lshrrev_b32 v20, 6, v0")
    a.e("s_nop 0")
    a.e("v_readfirstlane_b32 s40, v20")
    a.e("s_and_b32 s41, s2, 7")
    a.e("s_lshr_b32 s42, s2, 3")
    a.e("s_and_b32 s43, s42, 3")
    a.e("s_lshr_b32 s53, s42, 2")
    a.e("s_movk_i32 s44, 3277")
    a.e("s_movk_i32 s45, 1280")
    a.e("s_lshl_b32 s46, s40, 4")
    for j in range(5):
        a.e(f"v_add_u32 v20, {64*j}, v{vLANE}")
        a.e("v_mul_lo_u32 v21, v20, s44")
        a.e("v_lshrrev_b32 v21, 16, v21")
        a.e("v_mul_u32_u24 v22, 20, v21")
        a.e("v_sub_u32 v22, v20, v22")
        a.e("v_add_u32 v21, s46, v21")
        a.e("v_mul_lo_u32 v21, v21, s45")
        a.e(f"v_lshl_add_u32 v{vWD[j]}, v22, 4, v21")
    a.e(f"v_lshlrev_b32 v{vL16}, 4, v{vLANE}")
    a.e(f"v_lshrrev_b32 v21, 5, v{vLANE}")
    a.e(f"v_and_b32 v22, 15, v{vLANE}")
    a.e("v_lshrrev_b32 v23, 2, v22")
    a.e("v_and_b32 v22, 3, v22")
    a.e("v_lshl_add_u32 v23, v21, 3, v23")
    a.e("v_mul_u32_u24 v23, 320, v23")
    a.e(f"v_lshrrev_b32 v24, 4, v{vLANE}")
    a.e("v_and_b32 v24, 1, v24")
    a.e("v_lshl_add_u32 v23, v24, 5, v23")
    a.e(f"v_lshl_add_u32 v{vRB}, v22, 3, v23")
    a.e("s_waitcnt lgkmcnt(0)")
    srd(a, 20, 4, 4096 * 640 * 2)
    srd(a, 24, 10, 268435456)
    a.e("s_mul_i32 s47, s41, 163840")
    a.e("s_mul_i32 s48, s43, 320")
    a.e("s_add_u32 s47, s47, s48")
    a.e("s_lshl_b32 s48, s53, 5")
    a.e("s_add_u32 s48, s48, s41")
    a.e("s_lshl_b32 s48, s48, 15")
    a.e("s_lshl_b32 s51, s40, 13")
    a.e("s_add_u32 s48, s48, s51")
    a.e("s_mul_i32 s49, s40, 5120")
    a.e("s_lshl_b32 s54, s43, 1")
    a.e("s_add_u32 s54, s54, s53")
    if not opt.get("rot2", 1):
        a.e("s_mov_b32 s54, 0")

    def dma(T):
        a.e("s_and_b32 s54, s54, 7")
        a.e("s_lshr_b32 s55, s54, 1")
        a.e("s_and_b32 s56, s54, 1")
        a.e("s_add_u32 s54, s54, 1")
        a.e("s_mul_i32 s52, s55, 1310720")
        a.e("s_mul_i32 s57, s56, 81920")
        a.e("s_add_u32 s52, s52, s57")
        a.e("s_add_u32 s52, s52, s47")
        for j in range(5):
            a.e(f"s_add_u32 s51, s49, {T*WT + j*1024}")
            a.e("s_mov_b32 m0, s51")
            a.e("s_nop 0")
            a.vm(f"buffer_load_dwordx4 v{vWD[j]}, s[20:23], s52 offen lds", f"w{T}")
        a.e("s_lshl_b32 s52, s55, 18")
        a.e("s_lshl_b32 s57, s56, 12")
        a.e("s_add_u32 s52, s52, s57")
        a.e("s_add_u32 s52, s52, s48")
        for sp in range(4):
            a.vm(f"buffer_load_dwordx4 {vr(XB + 16*T + 4*sp, 4)}, v{vL16}, s[24:27], s52 offen offset:{sp*1024}", f"w{T}")

    for T in range(AHEAD):
        dma(T)
    stamp(31)
    for T in range(8):
        a.c(f"step {T}")
        a.wait_vm({f"w{T}"})
        a.e("s_barrier")
        stamp(1 + T)
        if T + AHEAD < 8:
            dma(T + AHEAD)
        a.e(f"v_add_u32 v{vRA}, {T*WT}, v{vRB}")
        items = []
        for sp in range(4):
            for ct in range(5):
                reads = [(f"ds_read_b64_tr_b16 {{d}}, v{vRA} offset:{(16*sp + 4*sec)*320 + ct*64}", 2 * sec, 2) for sec in range(2)]
                acc = vr(ACC + 16 * ct, 16)
                cin = "0" if (T == 0 and sp == 0) else acc
                items.append((reads, f"{MFMA} {acc}, {{a}}, {vr(XB + 16*T + 4*sp, 4)}, {cin}"))
        head, groups = mfma_stream(items, BUF, 6)
        a.ext(merge(head, groups, []))
    stamp(28)
    a.e(f"s_mul_i32 s50, s41, {PART_STRIDE}")
    a.e("s_mul_i32 s51, s42, 81920")
    a.e("s_add_u32 s50, s50, s51")
    a.e("s_mul_i32 s51, s40, 20480")
    a.e("s_add_u32 s50, s50, s51")
    a.e(f"s_add_u32 s50, s50, {PART_OFF}")
    a.e("s_nop 7")
    for ct in range(5):
        for g in range(4):
            a.e(f"buffer_store_dwordx4 {vr(ACC + 16*ct + 4*g, 4)}, v{vL16}, s[24:27], s50 offen offset:{g*1024}")
        a.e("s_add_u32 s50, s50, 4096")
    if STAMP:
        a.e("s_waitcnt vmcnt(0)")
        stamp(29)
        a.e(f"s_cmp_eq_u32 s2, {STAMP - 1}")
        a.e("s_cbranch_scc0 L_oproj_end")
        a.e("s_cmp_eq_u32 s40, 0")
        a.e("s_cbranch_scc0 L_oproj_end")
        srd(a, 64, 8, 256)
        a.e(f"v_lshlrev_b32 v29, 2, v{vLANE}")
        a.e("buffer_store_dword v28, v29, s[64:67], 0 offen")
    a.label("L_oproj_end")
    a.e("s_endpgm")
    check_hazards(a.lines, "oproj")


def gen_reduce(a, opt):
    a.label("reduce_kernel")
    a.e("s_cmp_ge_u32 s2, 640")
    a.e("s_cbranch_scc1 L_reduce_end")
    a.e("s_load_dwordx2 s[4:5], s[0:1], 40")
    a.e("s_load_dwordx2 s[6:7], s[0:1], 56")
    a.e("s_lshl_b32 s3, s2, 12")
    a.e("v_lshlrev_b32 v2, 4, v0")
    a.e("s_mul_i32 s8, s2, 3277")
    a.e("s_lshr_b32 s8, s8, 16")
    a.e("s_mul_i32 s9, s8, 20")
    a.e("s_sub_u32 s9, s2, s9")
    a.e("s_mul_i32 s10, s9, 13108")
    a.e("s_lshr_b32 s10, s10, 16")
    a.e("s_mul_i32 s11, s10, 5")
    a.e("s_sub_u32 s11, s9, s11")
    a.e("s_lshr_b32 s12, s8, 2")
    a.e("s_and_b32 s13, s8, 3")
    a.e("s_lshl_b32 s12, s12, 7")
    a.e("s_lshl_b32 s10, s10, 5")
    a.e("s_add_u32 s12, s12, s10")
    a.e("s_mul_i32 s12, s12, 1280")
    a.e("s_mul_i32 s13, s13, 320")
    a.e("s_add_u32 s12, s12, s13")
    a.e("s_lshl_b32 s11, s11, 6")
    a.e("s_add_u32 s12, s12, s11")
    a.e("v_and_b32 v4, 31, v0")
    a.e("v_mul_u32_u24 v4, 1280, v4")
    a.e("v_lshrrev_b32 v5, 5, v0")
    a.e("v_lshl_add_u32 v3, v5, 3, v4")
    a.e("s_waitcnt lgkmcnt(0)")
    srd(a, 20, 4, 1024 * 640 * 2)
    srd(a, 24, 6, 268435456)
    a.e(f"s_add_u32 s3, s3, {PART_OFF}")
    for ks in range(8):
        a.e(f"buffer_load_dwordx4 {vr(8 + 4*ks, 4)}, v2, s[24:27], s3 offen")
        if ks < 7:
            a.e(f"s_add_u32 s3, s3, {PART_STRIDE}")
    for ks in range(1, 8):
        a.e(f"s_waitcnt vmcnt({7-ks})")
        for i in range(4):
            a.e(f"v_add_f32 v{8+i}, v{8+i}, v{8+4*ks+i}")
    a.e("v_cvt_pk_bf16_f32 v6, v8, v9")
    a.e("v_cvt_pk_bf16_f32 v7, v10, v11")
    a.e("buffer_store_dwordx2 v[6:7], v3, s[20:23], s12 offen")
    a.label("L_reduce_end")
    a.e("s_endpgm")


def kd(name, vgpr, acc, sgpr=102):
    return f""".amdhsa_kernel {name}
  .amdhsa_next_free_vgpr {vgpr}
  .amdhsa_next_free_sgpr {sgpr}
  .amdhsa_accum_offset {acc}
  .amdhsa_group_segment_fixed_size 0
  .amdhsa_kernarg_size 64
  .amdhsa_user_sgpr_count 2
  .amdhsa_user_sgpr_kernarg_segment_ptr 1
  .amdhsa_system_sgpr_workgroup_id_x 1
.end_amdhsa_kernel
"""


def main():
    out = sys.argv[1] if len(sys.argv) > 1 else "standalone__mha_block_cached__near_ridge.s"
    opt = {}
    for kv in sys.argv[2:]:
        k, v = kv.split("=")
        opt[k] = int(v)
    txt = HEADER
    txt += "; @launch kernel=attn_kernel grid=(256,1,1) block=(256,1,1) lds=163840\n"
    txt += f"; @launch kernel=oproj_kernel grid=(256,1,1) block=(256,1,1) lds={8*WT}\n"
    txt += "; @launch kernel=reduce_kernel grid=(640,1,1) block=(256,1,1) lds=0\n"
    txt += '.amdgcn_target "amdgcn-amd-amdhsa--gfx950"\n.text\n'
    for name, fn in (("attn_kernel", gen_attn), ("oproj_kernel", gen_oproj), ("reduce_kernel", gen_reduce)):
        a = Asm()
        fn(a, opt)
        txt += f".globl {name}\n.p2align 8\n.type {name},@function\n" + a.text()
    txt += '.section .rodata,"a"\n'
    for name, v, acc in (("attn_kernel", 288, 256), ("oproj_kernel", 256, 256), ("reduce_kernel", 40, 40)):
        txt += ".p2align 6\n" + kd(name, v, acc)
    open(out, "w").write(txt)


if __name__ == "__main__":
    main()
```

```python
import sys, math, os
sys.path.insert(0, os.path.dirname(os.path.abspath(__file__)))
from asmlib import *

HEADER = """; Kernarg layout for this problem (64 bytes, ptrs only, base s[0:1]):
"""

MFMA = "v_mfma_f32_32x32x16_bf16"
SLOT = 16384
KS = [i * SLOT for i in range(5)]
VS = [81920 + i * SLOT for i in range(5)]
PART_OFF = 8388608
STAMP_OFF = 0x4000000


def srd(a, d, p, n):
    a.e(f"s_mov_b32 s{d}, s{p}")
    a.e(f"s_mov_b32 s{d+1}, s{p+1}")
    a.e(f"s_mov_b32 s{d+2}, {n}")
    a.e(f"s_mov_b32 s{d+3}, 0x00020000")


class Addr:
    def __init__(self, regs, cur=0):
        self.regs = regs
        self.cur = cur

    def off(self, x, out):
        if not (0 <= x - self.cur <= 65535):
            new = (x // SLOT) * SLOT
            d = (new - self.cur) & 0xffffffff
            for r in self.regs:
                out.append(f"v_add_u32 v{r}, {d:#x}, v{r}")
            self.cur = new
        return x - self.cur


class Stream:
    def __init__(self, bufs, look, maxrd=3):
        self.items = []
        self.bufs = bufs
        self.look = look
        self.maxrd = maxrd
        self.sync = {}
        self.fill = {}

    def add(self, mfma, reads=(), gate=None, pre=()):
        self.items.append(dict(mfma=mfma, reads=list(reads), gate=gate, pre=list(pre)))
        return len(self.items) - 1

    def n(self):
        return len(self.items)

    def add_sync(self, pos, gate, extra_before=(), extra_after=()):
        assert pos not in self.sync
        self.sync[pos] = (gate, list(extra_before), list(extra_after))

    def put(self, pos, instrs):
        self.fill.setdefault(pos, []).extend(instrs)

    def spread(self, instrs, g0, g1):
        def cost(s):
            return 2 if re.match(r"v_(exp|rcp|log|rsq|sqrt)", s) else 1
        tot = sum(cost(s) for s in instrs)
        ng = g1 - g0
        acc = 0
        k = 0
        for g in range(ng):
            target = tot * (g + 1) / ng
            while k < len(instrs) and (acc + cost(instrs[k]) <= target + 0.5 or g == ng - 1):
                self.put(g0 + g, [instrs[k]])
                acc += cost(instrs[k])
                k += 1

    def emit(self, a, open_gates=()):
        items = self.items
        n = len(items)
        nb = len(self.bufs)
        gates = set(open_gates)
        gates.add(None)
        issued = 0
        ds_total = 0
        ds_done = 0
        last_ds = {}
        bufidx = 0
        bufof = {}
        inflight = []

        def out(s):
            if s.endswith(":"):
                a.label(s[:-1])
            else:
                a.e(s)

        def issue(upto, limit):
            nonlocal issued, ds_total, bufidx
            cnt = 0
            while issued < n and issued <= upto and cnt < limit:
                it = items[issued]
                if it["gate"] not in gates:
                    break
                needs_buf = any(r[4] is not None for r in it["reads"])
                if needs_buf:
                    if len(inflight) >= nb - 1:
                        break
                    b = self.bufs[bufidx % nb]
                    bufidx += 1
                    bufof[issued] = b
                    inflight.append(issued)
                for (ad, ri, lds, op, boff, nr, dst) in it["reads"]:
                    tmp = []
                    o = ad.off(lds, tmp)
                    for s in tmp:
                        out(s)
                    d = vr(bufof[issued] + boff, nr) if boff is not None else dst
                    out(f"{op} {d}, v{ad.regs[ri]} offset:{o}")
                    ds_total += 1
                    cnt += 1
                last_ds[issued] = ds_total
                issued += 1

        if -1 in self.sync:
            g, eb, ea = self.sync[-1]
            for s in eb: out(s)
            out("s_barrier")
            for s in ea: out(s)
            gates.add(g)
        issue(self.look - 1, 1000)
        for s in self.fill.get(-1, []):
            out(s)
        for i in range(n):
            it = items[i]
            assert issued > i, f"item {i} not issued (gate {it['gate']})"
            need = last_ds[i]
            if need > ds_done:
                tgt = need
                if i + 1 < issued and last_ds[i + 1] + 4 <= ds_total and last_ds[i + 1] > need:
                    tgt = last_ds[i + 1]
                pend = ds_total - tgt
                assert pend <= 15
                out(f"s_waitcnt lgkmcnt({pend})")
                ds_done = tgt
            for s in it["pre"]:
                out(s)
            out(it["mfma"].format(a=vr(bufof[i], 4)) if i in bufof else it["mfma"])
            if i in inflight:
                inflight.remove(i)
            if i in self.sync:
                g, eb, ea = self.sync[i]
                issue(n, 1000)
                assert issued == n or items[issued]["gate"] == g, (i, issued, items[issued]["gate"], g)
                if ds_done < ds_total:
                    out("s_waitcnt lgkmcnt(0)")
                    ds_done = ds_total
                for s in eb: out(s)
                out("s_barrier")
                for s in ea: out(s)
                gates.add(g)
            issue(i + self.look, min(self.maxrd, 15 - (ds_total - ds_done)))
            for s in self.fill.get(i, []):
                out(s)


def gen_fused(a, opt):
    NT = " nt" if opt.get("nt", 1) else ""
    STAMP = opt.get("stamp", 0)
    SCALE = (128 ** -0.5) * math.log2(math.e)
    THR = opt.get("thr", 8)
    LOOK = opt.get("look", 6)
    SYNCB = opt.get("syncb", 4)

    def stamp(idx, out=None):
        if not STAMP:
            return []
        r = ["s_memtime s[60:61]", "s_waitcnt lgkmcnt(0)", f"v_writelane_b32 v15, s60, {idx}"]
        if out is None:
            a.ext(r)
        return r

    def stamp_store():
        if not STAMP:
            return
        a.e("s_lshl_b32 s47, s2, 11")
        a.e("s_lshl_b32 s48, s40, 8")
        a.e("s_add_u32 s47, s47, s48")
        a.e(f"s_add_u32 s47, s47, {STAMP_OFF}")
        a.e("v_lshlrev_b32 v14, 2, v1")
        a.e("buffer_store_dword v15, v14, s[36:39], s47 offen")

    a.label("mha_kernel")
    a.e("s_cmp_ge_u32 s2, 256")
    a.e("s_cbranch_scc1 L_end")
    if STAMP:
        a.e("v_mov_b32 v15, 0")
    stamp(0)
    a.e("s_load_dwordx8 s[4:11], s[0:1], 0")
    a.e("s_load_dwordx8 s[12:19], s[0:1], 32")
    a.e("v_and_b32 v1, 63, v0")
    a.e("v_lshrrev_b32 v4, 6, v0")
    a.e("s_nop 0")
    a.e("v_readfirstlane_b32 s40, v4")
    a.e("s_and_b32 s41, s2, 31")
    a.e("s_lshr_b32 s42, s2, 5")
    a.e("s_and_b32 s44, s2, 7")
    a.e("s_lshr_b32 s45, s41, 3")
    a.e("s_lshl_b32 s43, s2, 18")
    a.e("v_lshrrev_b32 v4, 4, v1")
    a.e("v_and_b32 v5, 15, v1")
    a.e("v_lshrrev_b32 v6, 5, v1")
    a.e("v_and_b32 v7, 31, v1")
    a.e("s_cmp_ge_u32 s40, 4")
    a.e("s_cbranch_scc1 L_loader")

    vKB, vOB, vL16 = 2, 3, 10
    tA, tB, tC, tD = 11, 12, 13, 14
    KA = list(range(16, 24))
    VA = list(range(24, 28))
    ONES = 28
    O = 32
    Q = 96
    SS = [128, 144]
    PP = [160, 168]
    CI = 176
    L = 192
    BUF = [208 + 4 * i for i in range(12)]
    WA = [176, 177, 178, 179]
    XA = [180, 181, 182, 183]
    XB = [128, 144]
    ACC = 128
    OF = [96, 32, 64, 96]

    a.e("s_lshl_b32 s50, s40, 12")
    a.e(f"s_mov_b32 s49, {f32bits(SCALE):#x}")
    a.e(f"s_mov_b32 s46, {f32bits(float(THR)):#x}")
    a.e("v_xor_b32 v8, v6, v5")
    a.e("v_lshlrev_b32 v8, 4, v8")
    a.e(f"v_lshl_add_u32 v{KA[0]}, v7, 8, v8")
    for s in range(1, 8):
        a.e(f"v_xor_b32 v{KA[s]}, {s << 5}, v{KA[0]}")
    a.e("v_lshrrev_b32 v8, 1, v7")
    a.e("v_and_b32 v8, 7, v8")
    a.e("v_xor_b32 v8, v6, v8")
    a.e("v_lshlrev_b32 v8, 4, v8")
    a.e("v_lshl_add_u32 v8, v7, 7, v8")
    a.e(f"v_add_u32 v{XA[0]}, s50, v8")
    a.e(f"v_add_u32 v{XA[0]}, {VS[0]}, v{XA[0]}")
    for s in range(1, 4):
        a.e(f"v_xor_b32 v{XA[s]}, {s << 5}, v{XA[0]}")
    a.e("v_lshrrev_b32 v8, 2, v5")
    a.e("v_and_b32 v9, 3, v5")
    a.e("v_and_b32 v11, 1, v4")
    a.e("v_lshlrev_b32 v12, 6, v8")
    a.e("v_lshl_add_u32 v12, v11, 5, v12")
    a.e("v_lshl_add_u32 v13, v6, 2, v8")
    a.e("v_lshl_add_u32 v14, v13, 8, v12")
    a.e(f"v_lshl_add_u32 v{VA[0]}, v9, 3, v14")
    a.e(f"v_add_u32 v{VA[0]}, {VS[0]}, v{VA[0]}")
    for dt in range(1, 4):
        a.e(f"v_xor_b32 v{VA[dt]}, {dt << 6}, v{VA[0]}")
    a.e("v_lshlrev_b32 v14, 6, v13")
    a.e("v_lshl_add_u32 v14, v11, 5, v14")
    a.e(f"v_lshl_add_u32 v{vOB}, v9, 3, v14")
    a.e("v_lshl_add_u32 v13, v6, 3, v8")
    a.e("v_lshl_add_u32 v14, v13, 8, v12")
    a.e("v_and_b32 v13, 1, v9")
    a.e("v_lshlrev_b32 v13, 1, v13")
    a.e("v_lshrrev_b32 v12, 1, v9")
    a.e("v_or_b32 v13, v13, v12")
    a.e(f"v_lshl_add_u32 v{WA[0]}, v13, 3, v14")
    for dt in range(1, 4):
        a.e(f"v_xor_b32 v{WA[dt]}, {dt << 6}, v{WA[0]}")
    a.e(f"v_lshlrev_b32 v{vL16}, 4, v1")
    for i in range(4):
        a.e(f"v_mov_b32 v{ONES+i}, 0x3f803f80")
    a.e("s_waitcnt lgkmcnt(0)")
    srd(a, 36, 18, 268435456)
    srd(a, 72, 14, 1024 * 640 * 2)

    aK = Addr(KA, 0)
    aV = Addr(VA, VS[0])
    aW = Addr(WA, 0)
    aX = Addr(XA, VS[0])
    aOB = Addr([vOB], 0)

    st = Stream(BUF, LOOK)
    TR = "ds_read_b64_tr_b16"
    B128 = "ds_read_b128"

    def qj(T):
        return (T + 2) % 3

    qstart = []
    for T in range(10):
        wb, xb_l = KS[2 + qj(T)], VS[2 + qj(T)]
        xb = XB[T % 2]
        order = [(sp, dt) for sp in range(4) for dt in range(4)]
        if T == 9:
            order = [(sp, dt) for dt in range(4) for sp in range(4)]
        seen = set()
        first = True
        for sp, dt in order:
            reads = []
            if sp not in seen:
                seen.add(sp)
                reads.append((aX, sp, xb_l, B128, None, 4, vr(xb + 4 * sp, 4)))
            for sec in range(2):
                reads.append((aW, dt, wb + (16 * sp + 4 * sec) * 256, TR, 2 * sec, 2, None))
            acc = vr(O + 16 * dt, 16)
            cin = "0" if (T == 0 and sp == 0) else acc
            i = st.add(f"{MFMA} {acc}, {{a}}, {vr(xb + 4*sp, 4)}, {cin}", reads, gate=f"q{T}")
            if first:
                qstart.append(i)
                first = False
    st.add_sync(-1, "q0", extra_after=stamp(1, 1))
    for T in range(1, 10):
        st.add_sync(qstart[T] - SYNCB, f"q{T}", extra_after=stamp(1 + T, 1))
    qend = st.n()

    def qcvt(dt):
        r = []
        for i in range(16):
            r.append(f"v_mul_f32 v{O+16*dt+i}, s49, v{O+16*dt+i}")
        for j in range(8):
            r.append(f"v_cvt_pk_bf16_f32 v{Q+8*dt+j}, v{O+16*dt+2*j}, v{O+16*dt+2*j+1}")
        return r

    def qk_items(u, cin):
        t, kt = u >> 1, u & 1
        S = SS[u % 2]
        i0 = st.n()
        for s in range(8):
            reads = [(aK, s, KS[t % 5] + kt * 8192, B128, 0, 4, None)]
            acc = vr(S, 16)
            c = cin if s == 0 else acc
            st.add(f"{MFMA} {acc}, {{a}}, {vr(Q + 4*s, 4)}, {c}", reads, gate=f"k{t}")
        return i0

    def pv_items(u):
        t, kt = u >> 1, u & 1
        P = PP[u % 2]
        i0 = st.n()
        for ks in range(2):
            for dt in range(4):
                reads = [(aV, dt, VS[t % 5] + (32 * kt + 16 * ks + 8 * sec) * 256, TR, 2 * sec, 2, None) for sec in range(2)]
                acc = vr(O + 16 * dt, 16)
                c = "0" if (u == 0 and ks == 0) else acc
                st.add(f"{MFMA} {acc}, {{a}}, {vr(P + 4*ks, 4)}, {c}", reads, gate=f"v{t}")
            accl = vr(L, 16)
            c = "0" if (u == 0 and ks == 0) else accl
            st.add(f"{MFMA} {accl}, {vr(ONES, 4)}, {vr(P + 4*ks, 4)}, {c}")
        return i0

    def maxchain(dst, base):
        r = [f"v_max3_f32 v{dst}, v{base}, v{base+1}, v{base+2}"]
        for i in range(3, 15, 2):
            r.append(f"v_max3_f32 v{dst}, v{dst}, v{base+i}, v{base+i+1}")
        r.append(f"v_max_f32 v{dst}, v{dst}, v{base+15}")
        return r

    def expcvt(u):
        S, P = SS[u % 2], PP[u % 2]
        r = []
        for i in range(0, 16, 4):
            for k in range(4):
                r.append(f"v_exp_f32 v{S+i+k}, v{S+i+k}")
            if i >= 4:
                for j in (i // 2 - 2, i // 2 - 1):
                    r.append(f"v_cvt_pk_bf16_f32 v{P+j}, v{S+2*j}, v{S+2*j+1}")
        for j in (6, 7):
            r.append(f"v_cvt_pk_bf16_f32 v{P+j}, v{S+2*j}, v{S+2*j+1}")
        return r

    q9 = qstart[9]
    for dt in range(3):
        st.spread(qcvt(dt), q9 + 4 * dt + 6, q9 + 4 * dt + 10)
    i_qk0 = qk_items(0, "0")
    st.add_sync(i_qk0 - SYNCB, "k0", extra_after=stamp(11, 1))
    st.spread(qcvt(3), i_qk0 + 2, i_qk0 + 6)
    i_qk1 = qk_items(1, "0")
    S0, S1 = SS[0], SS[1]
    init = maxchain(tA, S0)
    init += [f"v_mov_b32 v{tB}, v{tA}", "s_nop 1", f"v_permlane32_swap_b32 v{tA}, v{tB}", "s_nop 0",
             f"v_max_f32 v{tA}, v{tA}, v{tB}"]
    for i in range(16):
        init.append(f"v_sub_f32 v{CI+i}, 0, v{tA}")
    for i in range(16):
        init.append(f"v_sub_f32 v{S0+i}, v{S0+i}, v{tA}")
    st.spread(init, i_qk1 + 4, i_qk1 + 8)
    carry = expcvt(0)
    st.put(i_qk1 + 7, carry)
    fix1 = [f"v_add_f32 v{S1+i}, v{S1+i}, v{CI}" for i in range(16)]
    st.put(i_qk1 + 7, fix1 + maxchain(tA, S1) + [f"v_cmp_lt_f32 vcc, s46, v{tA}", "s_nop 0",
                                                 "s_cbranch_vccnz L_rare_0", "L_back_0:"])

    for u in range(32):
        b0 = st.n()
        if u + 2 < 32:
            qk_items(u + 2, vr(CI, 16))
        pv0 = pv_items(u)
        b1 = st.n()
        if u % 2 == 0:
            t = u // 2
            gate = f"kv{t}"
            pos = b0 - (SYNCB if u else 1)
            st.add_sync(pos, gate, extra_after=stamp(12 + t, 1))
        if u + 1 < 32:
            st.spread(expcvt(u + 1), b0, b1 - 1)
        if u + 2 < 32:
            chk = maxchain(tA, SS[u % 2]) + [f"v_cmp_lt_f32 vcc, s46, v{tA}"]
            st.spread(chk, pv0 + 2, b1 - 1)
            st.put(b1 - 1, ["s_cbranch_vccnz L_rare_%d" % (u + 1), "L_back_%d:" % (u + 1)])
    for it in st.items:
        g = it["gate"]
        if g and g[0] == "k" and g != "k0":
            it["gate"] = f"kv{int(g[1:]) - 1}"
        elif g and g[0] == "v":
            it["gate"] = f"kv{int(g[1:])}"

    WOA = {(0, 0): KS[1], (0, 1): KS[2], (1, 0): KS[3], (1, 1): VS[2], (2, 0): KS[4], (2, 1): VS[3],
           (3, 0): VS[4], (3, 1): VS[0]}
    WOB = {0: VS[1], 1: VS[1] + 8192, 2: KS[0], 3: KS[0] + 8192}

    def op_item(hs, s, ct, gate, pre=()):
        half, ks = s >> 2, s & 3
        if ct < 4:
            reads = [(aV, ct, WOA[(hs, half)] + (16 * ks + 8 * sec) * 256, TR, 2 * sec, 2, None) for sec in range(2)]
        else:
            reads = [(aOB, 0, WOB[hs] + half * 4096 + (16 * ks + 8 * sec) * 64, TR, 2 * sec, 2, None) for sec in range(2)]
        acc = vr(ACC + 16 * ct, 16)
        c = "0" if (hs == 0 and s == 0) else acc
        return st.add(f"{MFMA} {acc}, {{a}}, {vr(OF[hs] + 4*s, 4)}, {c}", reads, gate=gate, pre=pre)

    def norm(s):
        dt, a2 = s >> 1, s & 1
        src = O + 16 * dt + 8 * a2
        d = OF[0] + 4 * s
        r = [f"v_mul_f32 v{src+i}, v{src+i}, v{tA}" for i in range(8)]
        r += [f"v_cvt_pk_bf16_f32 v{d+i}, v{src+2*i}, v{src+2*i+1}" for i in range(4)]
        r += [f"buffer_store_dwordx4 {vr(d, 4)}, v{vL16}, s[36:39], s47 offen offset:{(s % 4) * 1024} sc1"]
        if s == 3:
            r.append("s_add_u32 s47, s47, 4096")
        return r

    e0 = st.n()
    st.add_sync(e0 - SYNCB, "e0", extra_after=stamp(28, 1))
    pre0 = ["s_lshl_b32 s47, s2, 15", "s_lshl_b32 s48, s40, 13", "s_add_u32 s47, s47, s48", "s_nop 7", "s_nop 2",
            f"v_rcp_f32 v{tA}, v{L}", "s_nop 0"] + norm(0) + ["s_nop 1"]
    for s in range(8):
        for ct in range(5):
            op_item(0, s, ct, "e0", pre=pre0 if (s == 0 and ct == 0) else ())
    for s in range(1, 8):
        st.spread(norm(s), e0 + 5 * (s - 1), e0 + 5 * (s - 1) + 4)
    e2 = st.n()
    st.put(e2 - 2, ["s_waitcnt vmcnt(0)", "s_barrier"] + stamp(29, 1))
    ld = []
    for hs in range(1, 4):
        ld.append(f"s_add_u32 s48, s45, {hs}")
        ld.append("s_and_b32 s48, s48, 3")
        ld.append("s_lshl_b32 s48, s48, 3")
        ld.append("s_add_u32 s48, s48, s44")
        ld.append("s_lshl_b32 s51, s42, 5")
        ld.append("s_add_u32 s48, s48, s51")
        ld.append("s_lshl_b32 s48, s48, 15")
        ld.append("s_lshl_b32 s51, s40, 13")
        ld.append("s_add_u32 s48, s48, s51")
        for s in range(8):
            ld.append(f"buffer_load_dwordx4 {vr(OF[hs] + 4*s, 4)}, v{vL16}, s[36:39], s48 offen offset:{(s % 4) * 1024} sc1")
            if s == 3:
                ld.append("s_add_u32 s48, s48, 4096")
    st.add_sync(e2 - 1, "e2", extra_after=stamp(30, 1) + ld)
    for hs in (1, 2):
        for s in range(8):
            for ct in range(5):
                rem = 24 - (8 * (hs - 1) + s + 1)
                op_item(hs, s, ct, "e2", pre=[f"s_waitcnt vmcnt({rem})"] if ct == 0 else ())
    padr = ["s_lshl_b32 s47, s42, 2", "s_add_u32 s47, s47, s45", "s_lshl_b32 s47, s47, 3", "s_add_u32 s47, s47, s44",
            "s_mul_i32 s47, s47, 81920", "s_mul_i32 s48, s40, 20480", "s_add_u32 s47, s47, s48",
            f"s_add_u32 s47, s47, {PART_OFF}"]
    h3 = st.n()
    for ct in range(5):
        for s in range(8):
            op_item(3, s, ct, "e2", pre=(["s_waitcnt vmcnt(0)"] + padr) if (ct == 0 and s == 0) else ())

    def pstore(ct):
        r = [f"buffer_store_dwordx4 {vr(ACC + 16*ct + 4*g, 4)}, v{vL16}, s[36:39], s47 offen offset:{g*1024} sc1" for g in range(4)]
        r.append("s_add_u32 s47, s47, 4096")
        return r
    for ct in range(4):
        st.spread(pstore(ct), h3 + 8 * (ct + 1) + 3, h3 + 8 * (ct + 1) + 7)
    st.emit(a)
    a.e("s_nop 7")
    a.e("s_nop 3")
    a.ext(pstore(4))
    a.e("s_waitcnt vmcnt(0)")
    a.e("s_barrier")
    stamp(31)
    a.e("s_lshl_b32 s47, s42, 2")
    a.e("s_add_u32 s47, s47, s45")
    a.e("s_mul_i32 s47, s47, 655360")
    a.e(f"s_add_u32 s47, s47, {PART_OFF}")
    a.e("s_mul_i32 s52, s44, 10")
    a.e("s_add_u32 s52, s52, s40")
    a.e("v_and_b32 v4, 31, v1")
    a.e("v_mul_u32_u24 v4, 1280, v4")
    a.e("v_lshrrev_b32 v5, 5, v1")
    a.e("v_lshl_add_u32 v4, v5, 3, v4")
    a.e("s_barrier")
    stamp(32)
    R = 32
    for i in range(3):
        if i == 2:
            a.e("s_cmp_ge_u32 s40, 2")
            a.e("s_cbranch_scc1 L_red_sum")
        a.e(f"s_add_u32 s53, s52, {4*i}")
        a.e("s_lshl_b32 s53, s53, 10")
        a.e("s_add_u32 s53, s53, s47")
        for k in range(8):
            a.e(f"buffer_load_dwordx4 {vr(R + 32*i + 4*k, 4)}, v{vL16}, s[36:39], s53 offen sc1")
            if k < 7:
                a.e("s_add_u32 s53, s53, 81920")
    a.label("L_red_sum")
    for i in range(3):
        if i == 2:
            a.e("s_cmp_ge_u32 s40, 2")
            a.e("s_cbranch_scc1 L_red_done")
        a.e(f"s_add_u32 s53, s52, {4*i}")
        a.e("s_mul_i32 s54, s53, 3277")
        a.e("s_lshr_b32 s54, s54, 16")
        a.e("s_mul_i32 s55, s54, 20")
        a.e("s_sub_u32 s55, s53, s55")
        a.e("s_lshl_b32 s55, s55, 4")
        a.e("s_lshl_b32 s56, s42, 7")
        a.e("s_lshl_b32 s54, s54, 5")
        a.e("s_add_u32 s56, s56, s54")
        a.e("s_mul_i32 s56, s56, 1280")
        a.e("s_mul_i32 s54, s45, 320")
        a.e("s_add_u32 s56, s56, s54")
        a.e("s_add_u32 s56, s56, s55")
        a.e(f"s_waitcnt vmcnt({[8 + 0, 0 + 1, 2][i] if i else 8})")
        base = R + 32 * i
        for k in range(1, 8):
            for j in range(4):
                a.e(f"v_add_f32 v{base+j}, v{base+j}, v{base+4*k+j}")
        a.e(f"v_cvt_pk_bf16_f32 v{base+4}, v{base}, v{base+1}")
        a.e(f"v_cvt_pk_bf16_f32 v{base+5}, v{base+2}, v{base+3}")
        a.e(f"buffer_store_dwordx2 {vr(base+4, 2)}, v4, s[72:75], s56 offen")
    a.label("L_red_done")
    if STAMP:
        a.e("s_waitcnt vmcnt(0)")
    stamp(33)
    stamp_store()
    a.e("s_endpgm")

    for u in range(31):
        Sn, P = SS[(u + 1) % 2], PP[u % 2]
        a.label(f"L_rare_{u}")
        a.e("s_nop 15")
        a.e("s_nop 3")
        a.e(f"v_mov_b32 v{tB}, v{tA}")
        a.e("s_nop 1")
        a.e(f"v_permlane32_swap_b32 v{tA}, v{tB}")
        a.e("s_nop 0")
        a.e(f"v_max3_f32 v{tA}, v{tA}, v{tB}, 0")
        a.e(f"v_ceil_f32 v{tA}, v{tA}")
        a.e(f"v_min_f32 v{tB}, 0x43480000, v{tA}")
        a.e(f"v_cvt_i32_f32 v{tB}, v{tB}")
        a.e(f"v_sub_u32 v{tB}, 0, v{tB}")
        a.e(f"v_ldexp_f32 v{tB}, 1.0, v{tB}")
        if u > 0:
            for i in range(64):
                a.e(f"v_mul_f32 v{O+i}, v{O+i}, v{tB}")
            a.e(f"v_mul_f32 v{L}, v{L}, v{tB}")
        for j in range(8):
            a.e(f"v_lshlrev_b32 v{tC}, 16, v{P+j}")
            a.e(f"v_and_b32 v{tD}, 0xffff0000, v{P+j}")
            a.e(f"v_mul_f32 v{tC}, v{tC}, v{tB}")
            a.e(f"v_mul_f32 v{tD}, v{tD}, v{tB}")
            a.e(f"v_cvt_pk_bf16_f32 v{P+j}, v{tC}, v{tD}")
        for i in range(16):
            a.e(f"v_sub_f32 v{Sn+i}, v{Sn+i}, v{tA}")
            a.e(f"v_sub_f32 v{CI+i}, v{CI+i}, v{tA}")
        a.e("s_nop 1")
        a.e(f"s_branch L_back_{u}")

    a.label("L_loader")
    vKD = [2, 3, 8, 9]
    vVD = 10
    vW = [216, 217, 218, 219]
    vX = [220, 221, 222, 223]
    vOA = [224, 225, 226, 227]
    vOBd = [228, 229, 230, 231]
    vLW = [232, 233, 234]
    RS = [16, 80, 144]
    a.e("v_xor_b32 v11, v5, v4")
    a.e("v_lshlrev_b32 v11, 4, v11")
    a.e(f"v_lshl_add_u32 v{vKD[0]}, v4, 8, v11")
    for j in range(1, 4):
        a.e(f"v_xor_b32 v{vKD[j]}, {j << 6}, v{vKD[0]}")
    a.e("v_lshlrev_b32 v11, 2, v4")
    a.e("v_xor_b32 v11, v5, v11")
    a.e("v_lshlrev_b32 v11, 4, v11")
    a.e(f"v_lshl_add_u32 v{vVD}, v4, 8, v11")
    a.e(f"v_lshl_add_u32 v{vW[0]}, v4, 13, v11")
    for j in range(1, 4):
        a.e(f"v_add_u32 v{vW[j]}, {j * (32768 - 1024)}, v{vW[0]}")
    a.e("v_mul_u32_u24 v12, 1280, v4")
    a.e(f"v_add_u32 v{vOA[0]}, v12, v11")
    for j in range(1, 4):
        a.e(f"v_add_u32 v{vOA[j]}, {j * (5120 - 1024)}, v{vOA[0]}")
    a.e("v_lshrrev_b32 v11, 3, v1")
    a.e("v_mul_u32_u24 v11, 1280, v11")
    a.e("v_and_b32 v12, 7, v1")
    a.e("v_xor_b32 v12, v12, v4")
    a.e(f"v_lshl_add_u32 v{vX[0]}, v12, 4, v11")
    a.e(f"v_xor_b32 v{vX[1]}, 64, v{vX[0]}")
    a.e(f"v_add_u32 v{vX[2]}, {2 * 9216}, v{vX[0]}")
    a.e(f"v_add_u32 v{vX[3]}, {3 * 9216}, v{vX[1]}")
    a.e(f"v_add_u32 v{vX[1]}, 9216, v{vX[1]}")
    a.e("v_lshrrev_b32 v11, 2, v1")
    a.e("v_mul_u32_u24 v11, 1280, v11")
    a.e("v_and_b32 v12, 3, v1")
    a.e(f"v_lshl_add_u32 v{vOBd[0]}, v12, 4, v11")
    for j in range(1, 4):
        a.e(f"v_add_u32 v{vOBd[j]}, {j * (20480 - 1024)}, v{vOBd[0]}")
    a.e(f"v_lshlrev_b32 v{vLW[0]}, 4, v1")
    a.e(f"v_add_u32 v{vLW[1]}, 0x10000, v{vLW[0]}")
    a.e(f"v_add_u32 v{vLW[2]}, 0x20000, v{vLW[0]}")
    a.e("s_lshl_b32 s53, s41, 8")
    a.e("s_mul_i32 s59, s42, 163840")
    a.e("s_mul_i32 s62, s45, 3")
    a.e("s_add_u32 s62, s62, s42")
    a.e("s_cmp_ge_u32 s62, 10")
    a.e("s_cselect_b32 s47, 10, 0")
    a.e("s_sub_u32 s62, s62, s47")
    if not opt.get("rot", 1):
        a.e("s_mov_b32 s62, 0")
    a.e("s_waitcnt lgkmcnt(0)")
    srd(a, 20, 4, 8 * 128 * 640 * 2)
    srd(a, 24, 6, 67108864)
    srd(a, 28, 8, 67108864)
    srd(a, 32, 10, 640 * 4096 * 2)
    srd(a, 36, 18, 268435456)
    srd(a, 64, 12, 4096 * 640 * 2)
    srd(a, 68, 16, 256)
    a.e("s_cmp_eq_u32 s40, 5")
    a.e("s_cbranch_scc1 L_loader_b")

    def dma_q(T):
        wb, xb_l = KS[2 + qj(T)], VS[2 + qj(T)]
        a.e("s_lshl_b32 s48, s62, 19")
        a.e("s_add_u32 s48, s48, s53")
        a.e("s_lshl_b32 s51, s62, 7")
        a.e("s_add_u32 s51, s51, s59")
        a.e("s_add_u32 s62, s62, 1")
        a.e("s_cmp_eq_u32 s62, 10")
        a.e("s_cselect_b32 s62, 0, s62")
        for g in range(4):
            a.e(f"s_mov_b32 m0, {wb + g * 4096}")
            a.e("s_nop 0")
            for j in range(4):
                a.vm(f"buffer_load_dwordx4 v{vW[j]}, s[32:35], s48 offen offset:{j*1024} lds", f"q{T}")
            if g < 3:
                a.e(f"s_add_u32 s48, s48, {16 * 8192}")
            a.e(f"s_mov_b32 m0, {xb_l + g * 4096}")
            a.e("s_nop 0")
            for j in range(4):
                a.vm(f"buffer_load_dwordx4 v{vX[j]}, s[20:23], s51 offen offset:{j*1024} lds", f"q{T}")
            if g < 3:
                a.e(f"s_add_u32 s51, s51, {32 * 1280}")

    def kv_quarter(kind, t, g, reg=None):
        slot = (KS if kind == "k" else VS)[t % 5]
        a.e(f"s_add_u32 s48, s43, {t * 16384 + g * 4096}")
        if reg is None:
            a.e(f"s_mov_b32 m0, {slot + g * 4096}")
            a.e("s_nop 0")
        for j in range(4):
            va = vKD[j] if kind == "k" else vVD
            sr = "s[24:27]" if kind == "k" else "s[28:31]"
            if reg is None:
                a.vm(f"buffer_load_dwordx4 v{va}, {sr}, s48 offen offset:{j*1024}{NT} lds", f"{kind}{t}")
            else:
                a.vm(f"buffer_load_dwordx4 {vr(reg + 16*g + 4*j, 4)}, v{va}, {sr}, s48 offen offset:{j*1024}{NT}", f"{kind}{t}")

    def kv_tile(kind, t, reg=None):
        for g in range(4):
            kv_quarter(kind, t, g, reg)

    def kv_flush(kind, t, reg):
        slot = (KS if kind == "k" else VS)[t % 5]
        a.wait_vm({f"{kind}{t}"})
        for i in range(16):
            x = slot + i * 1024
            a.e(f"ds_write_b128 v{vLW[x >> 16]}, {vr(reg + 4*i, 4)} offset:{x & 0xffff}")

    def wo_head(hs):
        a.e(f"s_add_u32 s57, s45, {hs}")
        a.e("s_and_b32 s57, s57, 3")
        a.e("s_lshl_b32 s57, s57, 3")
        a.e("s_add_u32 s57, s57, s44")
        a.e("s_mul_i32 s57, s57, 163840")
        a.e("s_mul_i32 s58, s45, 320")
        a.e("s_add_u32 s57, s57, s58")

    def wo_a(hs, half, tag):
        wo_head(hs)
        slot = WOA[(hs, half)]
        for g in range(4):
            a.e(f"s_add_u32 s48, s57, {(64 * half + 16 * g) * 1280}")
            a.e(f"s_mov_b32 m0, {slot + g * 4096}")
            a.e("s_nop 0")
            for j in range(4):
                a.vm(f"buffer_load_dwordx4 v{vOA[j]}, s[64:67], s48 offen offset:{j*1024} lds", tag)

    def wo_b(hs0, tag):
        for hs in (hs0, hs0 + 1):
            wo_head(hs)
            for half in range(2):
                a.e(f"s_add_u32 s48, s57, {64 * half * 1280 + 256}")
                a.e(f"s_mov_b32 m0, {WOB[hs] + half * 4096}")
                a.e("s_nop 0")
                for j in range(4):
                    a.vm(f"buffer_load_dwordx4 v{vOBd[j]}, s[64:67], s48 offen offset:{j*1024} lds", tag)

    def bar(idx=None):
        a.e("s_barrier")
        if idx is not None:
            stamp(idx)

    def lgk():
        a.e("s_waitcnt lgkmcnt(0)")

    dma_q(0)
    dma_q(1)
    for T in range(10):
        a.wait_vm({f"q{T}"})
        bar(1 + T)
        if T + 2 <= 9:
            dma_q(T + 2)
        if T == 7:
            kv_tile("v", 3, RS[0])
        if T == 8:
            kv_tile("k", 4, RS[1])
        if T == 9:
            kv_tile("v", 4, RS[2])
    bar(11)
    kv_flush("v", 3, RS[0])
    for t in range(16):
        if t + 1 >= 4 and t + 1 <= 15:
            a.wait_vm({f"k{t+1}"})
        lgk()
        bar(12 + t)
        if t + 5 <= 15:
            kv_tile("k", t + 5)
        if t == 0:
            kv_flush("k", 4, RS[1])
        if t == 1:
            kv_flush("v", 4, RS[2])
        if t == 11:
            wo_a(0, 0, "w0")
        if t == 12:
            wo_a(0, 1, "w0")
        if t == 13:
            wo_a(1, 0, "w1")
        if t == 14:
            wo_a(2, 0, "w1")
        if t == 15:
            wo_b(2, "w1")
    a.wait_vm({"w0"})
    bar(28)
    a.e("s_lshl_b32 s54, s42, 3")
    a.e("s_add_u32 s54, s54, s44")
    a.e("s_lshl_b32 s54, s54, 2")
    a.e("s_add_u32 s55, s54, s45")
    a.e("v_mov_b32 v16, 1")
    a.e("v_mov_b32 v17, 0")
    a.e("v_mov_b32 v18, 3")
    a.e("v_lshlrev_b32 v19, 2, v1")
    a.e("s_mov_b64 exec, 1")
    bar(29)
    a.e("buffer_store_byte v16, v17, s[68:71], s55 offen sc1")
    a.e("s_mov_b32 s56, 0")
    a.label("L_poll1")
    a.e("buffer_load_dword v20, v17, s[68:71], s54 offen sc1")
    a.e("s_add_u32 s56, s56, 1")
    a.e("s_waitcnt vmcnt(0)")
    a.e("v_readfirstlane_b32 s57, v20")
    a.e("s_and_b32 s57, s57, 0x01010101")
    a.e("s_cmp_eq_u32 s57, 0x01010101")
    a.e("s_cbranch_scc1 L_poll1_done")
    a.e("s_sleep 1")
    a.e("s_cmp_lt_u32 s56, 0x40000")
    a.e("s_cbranch_scc1 L_poll1")
    a.label("L_poll1_done")
    a.vq = []
    bar(30)
    bar(31)
    a.e("buffer_store_byte v18, v17, s[68:71], s55 offen sc1")
    a.e("s_mov_b64 exec, 0xff")
    a.e("s_lshl_b32 s54, s42, 5")
    a.e("s_lshl_b32 s58, s45, 3")
    a.e("s_add_u32 s58, s58, 1")
    a.e("s_mov_b32 s56, 0")
    a.label("L_poll2")
    a.e("buffer_load_dword v20, v19, s[68:71], s54 offen sc1")
    a.e("s_add_u32 s56, s56, 1")
    a.e("s_waitcnt vmcnt(0)")
    a.e("v_lshrrev_b32 v20, s58, v20")
    a.e("v_and_b32 v20, 1, v20")
    a.e("v_cmp_eq_u32 vcc, 1, v20")
    a.e("s_nop 1")
    a.e("s_cmp_eq_u32 vcc_lo, 0xff")
    a.e("s_cbranch_scc1 L_poll2_done")
    a.e("s_sleep 1")
    a.e("s_cmp_lt_u32 s56, 0x40000")
    a.e("s_cbranch_scc1 L_poll2")
    a.label("L_poll2_done")
    bar(32)
    a.e("s_mov_b64 exec, -1")
    stamp_store()
    a.e("s_endpgm")

    a.label("L_loader_b")
    a.vq = []
    seq = []
    for kind, t, reg in (("k", 0, None), ("v", 0, None), ("k", 1, None), ("v", 1, None),
                         ("k", 2, RS[0]), ("v", 2, RS[1]), ("k", 3, RS[2])):
        for g in range(4):
            seq.append((kind, t, g, reg))
    PRE = opt.get("pre", 6)
    PER = opt.get("per", 3)
    SLP = opt.get("slp", 8)
    k = 0
    a.e(f"s_sleep {opt.get('slp0', 4)}")
    while k < PRE:
        for q in seq[k:k + 2]:
            kv_quarter(*q)
        k += 2
        if k < PRE:
            a.e(f"s_sleep {SLP}")
    for T in range(10):
        bar(1 + T)
        n = PER if T < 7 else len(seq)
        for q in seq[k:k + n]:
            kv_quarter(*q)
        k = min(len(seq), k + n)
        if T == 9:
            kv_flush("k", 2, RS[0])
    a.wait_vm({"k0"})
    bar(11)
    kv_flush("v", 2, RS[1])
    for t in range(16):
        if t == 0:
            a.wait_vm({"k1", "v0"})
        elif t == 1:
            a.wait_vm({"v1"})
        elif t >= 5:
            a.wait_vm({f"v{t}"})
        lgk()
        bar(12 + t)
        if t >= 1 and t + 4 <= 15:
            kv_tile("v", t + 4)
        if t == 0:
            kv_flush("k", 3, RS[2])
        if t == 12:
            wo_b(0, "w0")
        if t == 13:
            wo_a(1, 1, "w1")
        if t == 14:
            wo_a(2, 1, "w1")
        if t == 15:
            wo_a(3, 0, "w1")
    a.wait_vm({"w0"})
    bar(28)
    wo_a(3, 1, "w1")
    bar(29)
    a.wait_vm({"w1"})
    bar(30)
    stamp_store()
    a.label("L_end")
    a.e("s_endpgm")
    check_hazards(a.lines, "fused")


def kd(name, vgpr, acc, sgpr=102):
    return f""".amdhsa_kernel {name}
  .amdhsa_next_free_vgpr {vgpr}
  .amdhsa_next_free_sgpr {sgpr}
  .amdhsa_accum_offset {acc}
  .amdhsa_group_segment_fixed_size 0
  .amdhsa_kernarg_size 64
  .amdhsa_user_sgpr_count 2
  .amdhsa_user_sgpr_kernarg_segment_ptr 1
  .amdhsa_system_sgpr_workgroup_id_x 1
.end_amdhsa_kernel
"""


def main():
    out = sys.argv[1] if len(sys.argv) > 1 else "standalone__mha_block_cached__near_ridge.s"
    opt = {}
    for kv in sys.argv[2:]:
        k, v = kv.split("=")
        opt[k] = int(v)
    txt = HEADER
    txt += "; @launch kernel=mha_kernel grid=(256,1,1) block=(384,1,1) lds=163840\n"
    txt += '.amdgcn_target "amdgcn-amd-amdhsa--gfx950"\n.text\n'
    a = Asm()
    gen_fused(a, opt)
    txt += ".globl mha_kernel\n.p2align 8\n.type mha_kernel,@function\n" + a.text()
    txt += '.section .rodata,"a"\n'
    txt += ".p2align 6\n" + kd("mha_kernel", 256, 256)
    open(out, "w").write(txt)


if __name__ == "__main__":
    main()
```

```python
import sys, math, os
sys.path.insert(0, os.path.dirname(os.path.abspath(__file__)))
from asmlib import *

HEADER = """; Kernarg layout for this problem (64 bytes, ptrs only, base s[0:1]):
"""

MFMA = "v_mfma_f32_32x32x16_bf16"
SLOT = 16384
OOB = 0x40000000


def srd(a, d, p, n):
    a.e(f"s_mov_b32 s{d}, s{p}")
    a.e(f"s_mov_b32 s{d+1}, s{p+1}")
    a.e(f"s_mov_b32 s{d+2}, {n}")
    a.e(f"s_mov_b32 s{d+3}, 0x00020000")


def gen_attn(a, opt):
    NT = " nt" if opt.get("nt", 1) else ""
    STAMP = opt.get("stamp", 0)
    SCALE = (128 ** -0.5) * math.log2(math.e)
    vLANE = 1
    vKD = [2, 3, 4, 5]
    vVD, vWD, vXE, vXOd = 6, 7, 8, 9
    vKB, vVB, vWB, vXB = 10, 11, 12, 13
    vKA = list(range(14, 22))
    vVA = list(range(22, 26))
    vM, vL, vAL, vMC = 26, 27, 28, 29
    t0, t1, t2, t3 = 30, 31, 240, 241
    O = 32
    SS = [96, 128]
    P = 160
    BUF = [176 + 4 * i for i in range(16)]
    XB = [96, 112]
    Q = 0

    def stamp(idx):
        if not STAMP:
            return
        a.e("s_memtime s[60:61]")
        a.e("s_waitcnt lgkmcnt(0)")
        a.e(f"v_writelane_b32 v255, s60, {idx}")

    a.label("attn_kernel")
    a.e("s_cmp_ge_u32 s2, 256")
    a.e("s_cbranch_scc1 L_attn_end")
    if opt.get("rt", 0) == 1:
        a.e("s_memrealtime s[72:73]")
    if STAMP:
        a.e("v_mov_b32 v255, 0")
    stamp(0)
    a.e("s_load_dwordx8 s[4:11], s[0:1], 0")
    a.e("s_load_dwordx8 s[12:19], s[0:1], 32")
    a.e(f"v_and_b32 v{vLANE}, 63, v0")
    a.e("v_lshrrev_b32 v242, 6, v0")
    a.e("s_nop 0")
    a.e("v_readfirstlane_b32 s40, v242")
    a.e("s_and_b32 s41, s2, 31")
    a.e("s_lshr_b32 s42, s2, 5")
    a.e("s_mov_b32 s55, s2")
    a.e("s_lshl_b32 s43, s55, 18")
    a.e(f"s_mov_b32 s49, {f32bits(SCALE):#x}")
    a.e("s_lshl_b32 s53, s41, 8")
    a.e("s_mul_i32 s59, s42, 163840")
    a.e("s_lshl_b32 s50, s40, 12")
    a.e(f"v_lshrrev_b32 v242, 4, v{vLANE}")
    a.e(f"v_and_b32 v243, 15, v{vLANE}")
    a.e(f"v_lshrrev_b32 v244, 5, v{vLANE}")
    a.e(f"v_and_b32 v245, 31, v{vLANE}")
    a.e("v_xor_b32 v246, v243, v242")
    a.e("v_lshlrev_b32 v246, 4, v246")
    a.e(f"v_lshl_add_u32 v{vKD[0]}, v242, 8, v246")
    for j in range(1, 4):
        a.e(f"v_xor_b32 v{vKD[j]}, {j << 6}, v{vKD[0]}")
    a.e("v_lshlrev_b32 v246, 2, v242")
    a.e("v_xor_b32 v246, v243, v246")
    a.e("v_lshlrev_b32 v246, 4, v246")
    a.e(f"v_lshl_add_u32 v{vVD}, v242, 8, v246")
    a.e(f"v_lshl_add_u32 v{vWD}, v242, 13, v246")
    a.e(f"v_lshrrev_b32 v246, 3, v{vLANE}")
    a.e("v_mul_u32_u24 v246, 1280, v246")
    a.e(f"v_and_b32 v247, 7, v{vLANE}")
    a.e("v_xor_b32 v247, v247, v242")
    a.e(f"v_lshl_add_u32 v{vXE}, v247, 4, v246")
    a.e(f"v_xor_b32 v{vXOd}, 64, v{vXE}")
    a.e("v_xor_b32 v246, v244, v243")
    a.e("v_lshlrev_b32 v246, 4, v246")
    a.e(f"v_lshl_add_u32 v{vKB}, v245, 8, v246")
    a.e("v_lshrrev_b32 v246, 1, v245")
    a.e("v_and_b32 v246, 7, v246")
    a.e("v_xor_b32 v246, v244, v246")
    a.e("v_lshlrev_b32 v246, 4, v246")
    a.e("v_lshl_add_u32 v246, v245, 7, v246")
    a.e(f"v_add_u32 v{vXB}, s50, v246")
    a.e("v_lshrrev_b32 v246, 2, v243")
    a.e("v_and_b32 v247, 3, v243")
    a.e("v_and_b32 v248, 1, v242")
    a.e("v_lshlrev_b32 v249, 6, v246")
    a.e("v_lshl_add_u32 v249, v248, 5, v249")
    a.e("v_lshl_add_u32 v250, v244, 2, v246")
    a.e("v_lshl_add_u32 v250, v250, 8, v249")
    a.e(f"v_lshl_add_u32 v{vVB}, v247, 3, v250")
    a.e("v_lshl_add_u32 v250, v244, 3, v246")
    a.e("v_lshl_add_u32 v250, v250, 8, v249")
    a.e("v_and_b32 v251, 1, v247")
    a.e("v_lshlrev_b32 v251, 1, v251")
    a.e("v_lshrrev_b32 v252, 1, v247")
    a.e("v_or_b32 v251, v251, v252")
    a.e(f"v_lshl_add_u32 v{vWB}, v251, 3, v250")
    a.e("s_waitcnt lgkmcnt(0)")
    srd(a, 20, 4, 8 * 128 * 640 * 2)
    srd(a, 24, 6, 67108864)
    srd(a, 28, 8, 67108864)
    srd(a, 32, 10, 640 * 4096 * 2)
    srd(a, 36, 18, 268435456)
    a.e("s_and_b32 s51, s40, 1")
    a.e("s_lshl_b32 s52, s51, 13")

    ROT = opt.get("rot", 1)
    a.e("s_lshr_b32 s62, s41, 3")
    a.e("s_mul_i32 s62, s62, 3")
    a.e("s_add_u32 s62, s62, s42")
    a.e("s_cmp_ge_u32 s62, 10")
    a.e("s_cselect_b32 s47, 10, 0")
    a.e("s_sub_u32 s62, s62, s47")
    if not ROT:
        a.e("s_mov_b32 s62, 0")
    qQ, qKV = [], []

    def tile_kind(n):
        if n == 0:
            return ("k", 0)
        if n % 2:
            return ("k", (n + 1) // 2)
        return ("v", n // 2 - 1)

    def dma_kv_quarter(n, qsreg, qadd, queues):
        kind, idx = tile_kind(n)
        a.e(f"s_add_u32 s47, s{qsreg}, {(n % 10) * SLOT + qadd}")
        a.e("s_mov_b32 m0, s47")
        a.e(f"s_add_u32 s48, s{qsreg}, {idx * 16384 + qadd}")
        a.e("s_add_u32 s48, s48, s43")
        for j in range(4):
            if kind == "k":
                a.e(f"buffer_load_dwordx4 v{vKD[j]}, s[24:27], s48 offen offset:{j*1024}{NT} lds")
            else:
                a.e(f"buffer_load_dwordx4 v{vVD}, s[28:31], s48 offen offset:{j*1024}{NT} lds")
            for q in queues:
                q.append(f"t{n}")

    def qbuf(i):
        return (4 + 2 * ((i + 2) % 3)) * SLOT

    def dma_q(T):
        base = qbuf(T)
        a.e("s_lshl_b32 s63, s62, 19")
        a.e("s_lshl_b32 s64, s62, 7")
        a.e("s_add_u32 s62, s62, 1")
        a.e("s_cmp_eq_u32 s62, 10")
        a.e("s_cselect_b32 s62, 0, s62")
        for g in range(2):
            a.e(f"s_add_u32 s47, s52, {base + g * 4096}")
            a.e("s_mov_b32 m0, s47")
            a.e("s_lshl_b32 s48, s51, 18")
            a.e("s_add_u32 s48, s48, s53")
            a.e("s_add_u32 s48, s48, s63")
            a.e(f"s_add_u32 s48, s48, {(16 * g) * 8192}")
            for j in range(4):
                a.e(f"buffer_load_dwordx4 v{vWD}, s[32:35], s48 offen offset:{j*1024} lds")
                qQ.append(f"q{T}")
                if j < 3:
                    a.e(f"s_add_u32 s48, s48, {32768 - 1024}")
        for g in range(2):
            a.e(f"s_add_u32 s47, s52, {base + SLOT + g * 4096}")
            a.e("s_mov_b32 m0, s47")
            a.e("s_mul_i32 s48, s51, 81920")
            a.e("s_add_u32 s48, s48, s59")
            a.e("s_add_u32 s48, s48, s64")
            a.e(f"s_add_u32 s48, s48, {32 * g * 1280}")
            for j in range(4):
                a.e(f"buffer_load_dwordx4 v{vXOd if j & 1 else vXE}, s[20:23], s48 offen offset:{j*1024} lds")
                qQ.append(f"q{T}")
                if j < 3:
                    a.e(f"s_add_u32 s48, s48, {10240 - 1024}")

    def wait_q(q, tags):
        last = max([i for i, t in enumerate(q) if t in tags], default=-1)
        if last < 0:
            return
        n = len(q) - 1 - last
        assert n <= 63
        a.e(f"s_waitcnt vmcnt({n})")
        del q[:last + 1]

    KVSTEP = {0: -1, 1: 1, 2: 3, 3: 5}
    if opt.get("kvearly", 0):
        KVSTEP = {0: -1, 1: 0, 2: 1, 3: 2}
    a.c("prologue loads (role split: waves 0,1 = Q stages, waves 2,3 = K/V tiles)")
    a.e("s_cmp_lt_u32 s40, 2")
    a.e("s_cbranch_scc0 L_attn_p_kv")
    for T in range(2):
        dma_q(T)
    a.e("s_branch L_attn_p_done")
    a.label("L_attn_p_kv")
    for n in range(4):
        if KVSTEP[n] == -1:
            for g in range(2):
                dma_kv_quarter(n, 52, g * 4096, [qKV])
    a.label("L_attn_p_done")
    stamp(31)

    for T in range(10):
        a.c(f"Q projection step {T}")
        a.e("s_cmp_lt_u32 s40, 2")
        a.e(f"s_cbranch_scc0 L_attn_qw{T}")
        wait_q(qQ, {f"q{T}"})
        a.label(f"L_attn_qw{T}")
        a.e("s_barrier")
        stamp(1 + T)
        if T <= 7:
            a.e("s_cmp_lt_u32 s40, 2")
            a.e(f"s_cbranch_scc0 L_attn_qi{T}")
            dma_q(T + 2)
            a.e(f"s_branch L_attn_qj{T}")
            a.label(f"L_attn_qi{T}")
            for n in range(4):
                if KVSTEP[n] == T:
                    for g in range(2):
                        dma_kv_quarter(n, 52, g * 4096, [qKV])
            a.label(f"L_attn_qj{T}")
        elif T >= 8:
            for n in (2 * T - 12, 2 * T - 11):
                dma_kv_quarter(n, 50, 0, [qQ, qKV])
        a.e(f"v_add_u32 v{vVA[0]}, {qbuf(T)}, v{vWB}")
        a.e(f"v_add_u32 v{vKA[0]}, {qbuf(T) + SLOT}, v{vXB}")
        for dt in range(1, 4):
            a.e(f"v_xor_b32 v{vVA[dt]}, {dt << 6}, v{vVA[0]}")
            a.e(f"v_xor_b32 v{vKA[dt]}, {dt << 5}, v{vKA[0]}")
        xb = XB[T % 2]
        pre = [f"ds_read_b128 {vr(xb + 4*sp, 4)}, v{vKA[sp]}" for sp in range(4)]
        items = []
        for sp in range(4):
            for dt in range(4):
                reads = [(f"ds_read_b64_tr_b16 {{d}}, v{vVA[dt]} offset:{(16*sp + 4*sec)*256}", 2 * sec, 2) for sec in range(2)]
                acc = vr(O + 16 * dt, 16)
                cin = "0" if (T == 0 and sp == 0) else acc
                items.append((reads, f"{MFMA} {acc}, {{a}}, {vr(xb + 4*sp, 4)}, {cin}"))
        head, groups = mfma_stream(items, BUF, 5, pre)
        a.ext(merge(head, groups, []))
    wait_q(qKV, {"t0", "t1", "t2", "t3"})
    a.e("s_barrier")
    dma_kv_quarter(8, 50, 0, [qQ, qKV])
    a.c("convert Q to bf16 B-operand layout (AGPRs)")
    a.e("s_nop 3")
    for dt in range(4):
        for s in range(2):
            for j in range(4):
                src = O + 16 * dt + 8 * s + 2 * j
                a.e(f"v_cvt_pk_bf16_f32 v{P + j}, v{src}, v{src+1}")
            for j in range(4):
                a.e(f"v_accvgpr_write_b32 a{Q + 4*(2*dt+s) + j}, v{P + j}")
    for i in range(64):
        a.e(f"v_mov_b32 v{O+i}, 0")
    a.e(f"v_mov_b32 v{vM}, 0xff800000")
    a.e(f"v_mov_b32 v{vL}, 0")

    def k_addrs(sreg_or_imm):
        r = [f"v_add_u32 v{vKA[0]}, {sreg_or_imm}, v{vKB}"]
        for s in range(1, 8):
            r.append(f"v_xor_b32 v{vKA[s]}, {s << 5}, v{vKA[0]}")
        return r

    def v_addrs(sreg_or_imm):
        r = [f"v_add_u32 v{vVA[0]}, {sreg_or_imm}, v{vVB}"]
        for dt in range(1, 4):
            r.append(f"v_xor_b32 v{vVA[dt]}, {dt << 6}, v{vVA[0]}")
        return r

    def qk_items(S):
        items = []
        for kt in range(2):
            for s in range(8):
                reads = [(f"ds_read_b128 {{d}}, v{vKA[s]} offset:{kt*8192}", 0, 4)]
                acc = vr(S + 16 * kt, 16)
                cin = "0" if s == 0 else acc
                items.append((reads, f"{MFMA} {acc}, {{a}}, {ar(Q + 4*s, 4)}, {cin}"))
        return items

    def pv_items():
        items = []
        for ks in range(4):
            for dt in range(4):
                reads = [(f"ds_read_b64_tr_b16 {{d}}, v{vVA[dt]} offset:{(16*ks + 8*sec)*256}", 2 * sec, 2) for sec in range(2)]
                acc = vr(O + 16 * dt, 16)
                items.append((reads, f"{MFMA} {acc}, {{a}}, {vr(P + 4*ks, 4)}, {acc}"))
        return items

    def mx_valu(S):
        r = []
        def maxchain(dst, base):
            r.append(f"v_max3_f32 v{dst}, v{base}, v{base+1}, v{base+2}")
            for i in range(3, 15, 2):
                r.append(f"v_max3_f32 v{dst}, v{dst}, v{base+i}, v{base+i+1}")
            r.append(f"v_max_f32 v{dst}, v{dst}, v{base+15}")
        maxchain(t0, S)
        maxchain(t1, S + 16)
        r.append(f"v_max_f32 v{t0}, v{t0}, v{t1}")
        r.append(f"v_mov_b32 v{t1}, v{t0}")
        r.append("s_nop 1")
        r.append(f"v_permlane32_swap_b32 v{t0}, v{t1}")
        r.append("s_nop 0")
        r.append(f"v_max3_f32 v{t0}, v{t0}, v{t1}, v{vM}")
        r.append(f"v_sub_f32 v{t1}, v{vM}, v{t0}")
        r.append(f"v_mul_f32 v{vMC}, s49, v{t0}")
        r.append(f"v_mul_f32 v{t1}, s49, v{t1}")
        r.append(f"v_mov_b32 v{vM}, v{t0}")
        r.append(f"v_exp_f32 v{vAL}, v{t1}")
        for i in range(0, 32, 4):
            for k in range(4):
                r.append(f"v_fma_f32 v{S+i+k}, v{S+i+k}, s49, -v{vMC}")
            for k in range(4):
                r.append(f"v_exp_f32 v{S+i+k}, v{S+i+k}")
        return r

    def fin_valu(S):
        r = []
        for i in range(64):
            r.append(f"v_mul_f32 v{O+i}, v{O+i}, v{vAL}")
        for j in range(16):
            r.append(f"v_cvt_pk_bf16_f32 v{P+j}, v{S+2*j}, v{S+2*j+1}")
        r.append(f"v_mul_f32 v{vL}, v{vL}, v{vAL}")
        r.append(f"v_add_f32 v{t0}, v{S+0}, v{S+1}")
        r.append(f"v_add_f32 v{t1}, v{S+2}, v{S+3}")
        r.append(f"v_add_f32 v{t2}, v{S+4}, v{S+5}")
        r.append(f"v_add_f32 v{t3}, v{S+6}, v{S+7}")
        for i in range(8, 32, 4):
            r.append(f"v_add_f32 v{t0}, v{t0}, v{S+i}")
            r.append(f"v_add_f32 v{t1}, v{t1}, v{S+i+1}")
            r.append(f"v_add_f32 v{t2}, v{t2}, v{S+i+2}")
            r.append(f"v_add_f32 v{t3}, v{t3}, v{S+i+3}")
        r.append(f"v_add_f32 v{t0}, v{t0}, v{t1}")
        r.append(f"v_add_f32 v{t2}, v{t2}, v{t3}")
        r.append(f"v_add_f32 v{t0}, v{t0}, v{t2}")
        r.append(f"v_add_f32 v{vL}, v{vL}, v{t0}")
        return r

    a.c("pre-loop: QK(0), MX(0)")
    a.ext(k_addrs(0))
    head, groups = mfma_stream(qk_items(SS[0]), BUF, 8)
    a.ext(merge(head, groups, []))
    mx = mx_valu(SS[0])
    a.ext(mx[:8]); a.e("s_nop 4"); a.ext(mx[8:])
    a.e("s_mov_b32 s44, 0")
    a.e(f"s_mov_b32 s45, {1*SLOT}")
    a.e(f"s_mov_b32 s46, {2*SLOT}")
    a.e(f"s_add_u32 s57, s50, {9*SLOT}")
    a.e("s_mov_b32 s58, s50")
    a.e("s_add_u32 s54, s43, s50")
    a.e(f"s_add_u32 s56, s54, {4*16384}")
    a.e(f"s_add_u32 s54, s54, {5*16384}")

    def body(par, dma, waitn, last=False, stampit=True):
        Sc, Sn = SS[par], SS[1 - par]
        a.e(f"s_waitcnt vmcnt({waitn})")
        a.e("s_barrier")
        if STAMP and stampit:
            a.e("s_add_u32 m0, s44, 12")
            stamp("m0")
        if dma:
            a.e("s_cmp_le_u32 s44, 10")
            a.e(f"s_cselect_b32 s47, s54, {OOB:#x}")
            a.e("s_cmp_le_u32 s44, 11")
            a.e(f"s_cselect_b32 s48, s56, {OOB:#x}")
            a.e("s_mov_b32 m0, s57")
            a.e("s_nop 0")
            for j in range(4):
                a.e(f"buffer_load_dwordx4 v{vKD[j]}, s[24:27], s47 offen offset:{j*1024}{NT} lds")
            a.e("s_mov_b32 m0, s58")
            a.e("s_nop 0")
            for j in range(4):
                a.e(f"buffer_load_dwordx4 v{vVD}, s[28:31], s48 offen offset:{j*1024}{NT} lds")
        if opt.get("nocompute", 0):
            pass
        elif not last:
            a.ext(k_addrs("s45"))
            a.ext(v_addrs("s46"))
            items = qk_items(Sn) + pv_items()
            head, groups = mfma_stream(items, BUF, 6)
            a.ext(merge(head, groups[:16], fin_valu(Sc)))
            a.ext(merge([], groups[16:], mx_valu(Sn)))
        else:
            a.ext(v_addrs("s46"))
            head, groups = mfma_stream(pv_items(), BUF, 6)
            a.ext(head)
            a.ext(fin_valu(Sc))
            a.ext(merge([], groups, []))
        if not last:
            a.e("s_add_u32 s57, s45, s50")
            a.e("s_add_u32 s58, s46, s50")
            a.e("s_add_u32 s45, s45, 32768")
            a.e("s_cmp_ge_u32 s45, 163840")
            a.e("s_cselect_b32 s47, 163840, 0")
            a.e("s_sub_u32 s45, s45, s47")
            a.e("s_add_u32 s46, s46, 32768")
            a.e("s_cmp_ge_u32 s46, 163840")
            a.e("s_cselect_b32 s47, 163840, 0")
            a.e("s_sub_u32 s46, s46, s47")
            a.e("s_add_u32 s54, s54, 16384")
            a.e("s_add_u32 s56, s56, 16384")
            a.e("s_add_u32 s44, s44, 1")

    l0 = len(a.lines)
    a.label("L_attn_loop")
    body(0, True, 24)
    body(1, True, 24)
    a.e("s_cmp_lt_u32 s44, 14")
    a.e("s_cbranch_scc1 L_attn_loop")
    l1 = len(a.lines)
    check_hazards(a.lines[l0:l1] + a.lines[l0:l1], "attn loop x2")
    body(0, False, 24)
    body(1, False, 16, last=True)

    stamp(28)
    a.c("epilogue")
    a.e(f"v_mov_b32 v{t0}, v{vL}")
    a.e(f"v_mov_b32 v{t1}, v{vL}")
    a.e("s_nop 1")
    a.e(f"v_permlane32_swap_b32 v{t0}, v{t1}")
    a.e("s_nop 1")
    a.e(f"v_add_f32 v{t0}, v{t0}, v{t1}")
    a.e(f"v_rcp_f32 v{t0}, v{t0}")
    a.e(f"v_lshlrev_b32 v{t1}, 4, v{vLANE}")
    a.e("s_lshl_b32 s47, s55, 15")
    a.e("s_lshl_b32 s48, s40, 13")
    a.e("s_add_u32 s47, s47, s48")
    a.e("s_nop 4")
    k = 0
    for dt in range(4):
        for a2 in range(2):
            src = O + 16 * dt + 8 * a2
            d = SS[0] + 4 * k
            for i in range(8):
                a.e(f"v_mul_f32 v{src+i}, v{src+i}, v{t0}")
            for i in range(4):
                a.e(f"v_cvt_pk_bf16_f32 v{d+i}, v{src+2*i}, v{src+2*i+1}")
            a.e("s_nop 1")
            a.e(f"v_permlane32_swap_b32 v{d}, v{d+2}")
            a.e(f"v_permlane32_swap_b32 v{d+1}, v{d+3}")
            a.e("s_nop 1")
            a.e(f"buffer_store_dwordx4 {vr(d, 4)}, v{t1}, s[36:39], s47 offen offset:{(k % 4) * 1024}")
            if k == 3:
                a.e("s_add_u32 s47, s47, 4096")
            k += 1
    if opt.get("rt", 0) == 1:
        a.e("s_waitcnt vmcnt(0)")
        a.e("s_memrealtime s[74:75]")
        a.e("s_waitcnt lgkmcnt(0)")
        a.e("v_mov_b32 v96, s72"); a.e("v_mov_b32 v97, s73"); a.e("v_mov_b32 v98, s74"); a.e("v_mov_b32 v99, s75")
        a.e("s_lshl_b32 s47, s2, 6")
        a.e("s_lshl_b32 s48, s40, 4")
        a.e("s_add_u32 s47, s47, s48")
        a.e("s_add_u32 s47, s47, 0x4000000")
        a.e("v_mov_b32 v100, 0")
        a.e("buffer_store_dwordx4 v[96:99], v100, s[36:39], s47 offen")
    if STAMP:
        a.e("s_waitcnt vmcnt(0)")
        stamp(29)
        a.e(f"s_cmp_eq_u32 s2, {STAMP - 1}")
        a.e("s_cbranch_scc0 L_attn_end")
        a.e(f"s_cmp_eq_u32 s40, {opt.get('stampw', 0)}")
        a.e("s_cbranch_scc0 L_attn_end")
        srd(a, 68, 16, 256)
        a.e(f"v_lshlrev_b32 v254, 2, v{vLANE}")
        a.e("buffer_store_dword v255, v254, s[68:71], 0 offen")
    a.label("L_attn_end")
    a.e("s_endpgm")
    check_hazards(a.lines, "attn")


PART_OFF = 8388608
PART_STRIDE = 1024 * 640 * 4
WT = 20480


def gen_oproj(a, opt):
    STAMP = opt.get("stamp2", 0)
    AHEAD = opt.get("ahead2", 2)
    vLANE = 1
    vWD = [2, 3, 4, 5, 6]
    vL16 = 7
    vRB = 9
    vRA = 11
    ACC = 32
    XB = 112
    BUF = [240, 244, 248, 252, 12, 16, 20, 24]

    def stamp(idx):
        if not STAMP:
            return
        a.e("s_memtime s[60:61]")
        a.e("s_waitcnt lgkmcnt(0)")
        a.e(f"v_writelane_b32 v28, s60, {idx}")

    a.label("oproj_kernel")
    a.e("s_cmp_ge_u32 s2, 256")
    a.e("s_cbranch_scc1 L_oproj_end")
    if opt.get("rt", 0) == 2:
        a.e("s_memrealtime s[72:73]")
    if STAMP:
        a.e("v_mov_b32 v28, 0")
    stamp(0)
    a.e("s_load_dwordx2 s[4:5], s[0:1], 32")
    a.e("s_load_dwordx4 s[8:11], s[0:1], 48")
    a.e(f"v_and_b32 v{vLANE}, 63, v0")
    a.e("v_lshrrev_b32 v20, 6, v0")
    a.e("s_nop 0")
    a.e("v_readfirstlane_b32 s40, v20")
    a.e("s_and_b32 s41, s2, 7")
    a.e("s_lshr_b32 s42, s2, 3")
    a.e("s_and_b32 s43, s42, 3")
    a.e("s_lshr_b32 s53, s42, 2")
    a.e("s_movk_i32 s44, 3277")
    a.e("s_movk_i32 s45, 1280")
    a.e("s_lshl_b32 s46, s40, 4")
    for j in range(5):
        a.e(f"v_add_u32 v20, {64*j}, v{vLANE}")
        a.e("v_mul_lo_u32 v21, v20, s44")
        a.e("v_lshrrev_b32 v21, 16, v21")
        a.e("v_mul_u32_u24 v22, 20, v21")
        a.e("v_sub_u32 v22, v20, v22")
        a.e("v_add_u32 v21, s46, v21")
        a.e("v_mul_lo_u32 v21, v21, s45")
        a.e(f"v_lshl_add_u32 v{vWD[j]}, v22, 4, v21")
    a.e(f"v_lshlrev_b32 v{vL16}, 4, v{vLANE}")
    a.e(f"v_lshrrev_b32 v21, 5, v{vLANE}")
    a.e(f"v_and_b32 v22, 15, v{vLANE}")
    a.e("v_lshrrev_b32 v23, 2, v22")
    a.e("v_and_b32 v22, 3, v22")
    a.e("v_lshl_add_u32 v23, v21, 3, v23")
    a.e("v_mul_u32_u24 v23, 320, v23")
    a.e(f"v_lshrrev_b32 v24, 4, v{vLANE}")
    a.e("v_and_b32 v24, 1, v24")
    a.e("v_lshl_add_u32 v23, v24, 5, v23")
    a.e(f"v_lshl_add_u32 v{vRB}, v22, 3, v23")
    a.e("s_waitcnt lgkmcnt(0)")
    srd(a, 20, 4, 4096 * 640 * 2)
    srd(a, 24, 10, 268435456)
    a.e("s_mul_i32 s47, s41, 163840")
    a.e("s_mul_i32 s48, s43, 320")
    a.e("s_add_u32 s47, s47, s48")
    a.e("s_lshl_b32 s48, s53, 5")
    a.e("s_add_u32 s48, s48, s41")
    a.e("s_lshl_b32 s48, s48, 15")
    a.e("s_lshl_b32 s51, s40, 13")
    a.e("s_add_u32 s48, s48, s51")
    a.e("s_mul_i32 s49, s40, 5120")
    a.e("s_lshl_b32 s54, s43, 1")
    a.e("s_add_u32 s54, s54, s53")
    if not opt.get("rot2", 1):
        a.e("s_mov_b32 s54, 0")

    def dma(T):
        a.e("s_and_b32 s54, s54, 7")
        a.e("s_lshr_b32 s55, s54, 1")
        a.e("s_and_b32 s56, s54, 1")
        a.e("s_add_u32 s54, s54, 1")
        a.e("s_mul_i32 s52, s55, 1310720")
        a.e("s_mul_i32 s57, s56, 81920")
        a.e("s_add_u32 s52, s52, s57")
        a.e("s_add_u32 s52, s52, s47")
        for j in range(5):
            a.e(f"s_add_u32 s51, s49, {T*WT + j*1024}")
            a.e("s_mov_b32 m0, s51")
            a.e("s_nop 0")
            a.vm(f"buffer_load_dwordx4 v{vWD[j]}, s[20:23], s52 offen lds", f"w{T}")
        a.e("s_lshl_b32 s52, s55, 18")
        a.e("s_lshl_b32 s57, s56, 12")
        a.e("s_add_u32 s52, s52, s57")
        a.e("s_add_u32 s52, s52, s48")
        for sp in range(4):
            a.vm(f"buffer_load_dwordx4 {vr(XB + 16*T + 4*sp, 4)}, v{vL16}, s[24:27], s52 offen offset:{sp*1024}", f"w{T}")

    for T in range(AHEAD):
        dma(T)
    stamp(31)
    for T in range(8):
        a.c(f"step {T}")
        a.wait_vm({f"w{T}"})
        a.e("s_barrier")
        stamp(1 + T)
        if T + AHEAD < 8:
            dma(T + AHEAD)
        a.e(f"v_add_u32 v{vRA}, {T*WT}, v{vRB}")
        items = []
        for sp in range(4):
            for ct in range(5):
                reads = [(f"ds_read_b64_tr_b16 {{d}}, v{vRA} offset:{(16*sp + 4*sec)*320 + ct*64}", 2 * sec, 2) for sec in range(2)]
                acc = vr(ACC + 16 * ct, 16)
                cin = "0" if (T == 0 and sp == 0) else acc
                items.append((reads, f"{MFMA} {acc}, {{a}}, {vr(XB + 16*T + 4*sp, 4)}, {cin}"))
        head, groups = mfma_stream(items, BUF, 6)
        a.ext(merge(head, groups, []))
    stamp(28)
    a.e(f"s_mul_i32 s50, s41, {PART_STRIDE}")
    a.e("s_mul_i32 s51, s42, 81920")
    a.e("s_add_u32 s50, s50, s51")
    a.e("s_mul_i32 s51, s40, 20480")
    a.e("s_add_u32 s50, s50, s51")
    a.e(f"s_add_u32 s50, s50, {PART_OFF}")
    a.e("s_nop 7")
    for ct in range(5):
        for g in range(4):
            a.e(f"buffer_store_dwordx4 {vr(ACC + 16*ct + 4*g, 4)}, v{vL16}, s[24:27], s50 offen offset:{g*1024}")
        a.e("s_add_u32 s50, s50, 4096")
    if opt.get("rt", 0) == 2:
        a.e("s_waitcnt vmcnt(0)")
        a.e("s_memrealtime s[74:75]")
        a.e("s_waitcnt lgkmcnt(0)")
        a.e("v_mov_b32 v96, s72"); a.e("v_mov_b32 v97, s73"); a.e("v_mov_b32 v98, s74"); a.e("v_mov_b32 v99, s75")
        a.e("s_lshl_b32 s47, s2, 6")
        a.e("s_lshl_b32 s48, s40, 4")
        a.e("s_add_u32 s47, s47, s48")
        a.e("s_add_u32 s47, s47, 0x4000000")
        a.e("v_mov_b32 v100, 0")
        a.e("buffer_store_dwordx4 v[96:99], v100, s[24:27], s47 offen")
    if STAMP:
        a.e("s_waitcnt vmcnt(0)")
        stamp(29)
        a.e(f"s_cmp_eq_u32 s2, {STAMP - 1}")
        a.e("s_cbranch_scc0 L_oproj_end")
        a.e("s_cmp_eq_u32 s40, 0")
        a.e("s_cbranch_scc0 L_oproj_end")
        srd(a, 64, 8, 256)
        a.e(f"v_lshlrev_b32 v29, 2, v{vLANE}")
        a.e("buffer_store_dword v28, v29, s[64:67], 0 offen")
    a.label("L_oproj_end")
    a.e("s_endpgm")
    check_hazards(a.lines, "oproj")


def gen_reduce(a, opt):
    a.label("reduce_kernel")
    a.e("s_cmp_ge_u32 s2, 640")
    a.e("s_cbranch_scc1 L_reduce_end")
    a.e("s_load_dwordx2 s[4:5], s[0:1], 40")
    a.e("s_load_dwordx2 s[6:7], s[0:1], 56")
    a.e("s_lshl_b32 s3, s2, 12")
    a.e("v_lshlrev_b32 v2, 4, v0")
    a.e("s_mul_i32 s8, s2, 3277")
    a.e("s_lshr_b32 s8, s8, 16")
    a.e("s_mul_i32 s9, s8, 20")
    a.e("s_sub_u32 s9, s2, s9")
    a.e("s_mul_i32 s10, s9, 13108")
    a.e("s_lshr_b32 s10, s10, 16")
    a.e("s_mul_i32 s11, s10, 5")
    a.e("s_sub_u32 s11, s9, s11")
    a.e("s_lshr_b32 s12, s8, 2")
    a.e("s_and_b32 s13, s8, 3")
    a.e("s_lshl_b32 s12, s12, 7")
    a.e("s_lshl_b32 s10, s10, 5")
    a.e("s_add_u32 s12, s12, s10")
    a.e("s_mul_i32 s12, s12, 1280")
    a.e("s_mul_i32 s13, s13, 320")
    a.e("s_add_u32 s12, s12, s13")
    a.e("s_lshl_b32 s11, s11, 6")
    a.e("s_add_u32 s12, s12, s11")
    a.e("v_and_b32 v4, 31, v0")
    a.e("v_mul_u32_u24 v4, 1280, v4")
    a.e("v_lshrrev_b32 v5, 5, v0")
    a.e("v_lshl_add_u32 v3, v5, 3, v4")
    a.e("s_waitcnt lgkmcnt(0)")
    srd(a, 20, 4, 1024 * 640 * 2)
    srd(a, 24, 6, 268435456)
    a.e(f"s_add_u32 s3, s3, {PART_OFF}")
    for ks in range(8):
        a.e(f"buffer_load_dwordx4 {vr(8 + 4*ks, 4)}, v2, s[24:27], s3 offen")
        if ks < 7:
            a.e(f"s_add_u32 s3, s3, {PART_STRIDE}")
    for ks in range(1, 8):
        a.e(f"s_waitcnt vmcnt({7-ks})")
        for i in range(4):
            a.e(f"v_add_f32 v{8+i}, v{8+i}, v{8+4*ks+i}")
    a.e("v_cvt_pk_bf16_f32 v6, v8, v9")
    a.e("v_cvt_pk_bf16_f32 v7, v10, v11")
    a.e("buffer_store_dwordx2 v[6:7], v3, s[20:23], s12 offen")
    a.label("L_reduce_end")
    a.e("s_endpgm")


def kd(name, vgpr, acc, sgpr=102):
    return f""".amdhsa_kernel {name}
  .amdhsa_next_free_vgpr {vgpr}
  .amdhsa_next_free_sgpr {sgpr}
  .amdhsa_accum_offset {acc}
  .amdhsa_group_segment_fixed_size 0
  .amdhsa_kernarg_size 64
  .amdhsa_user_sgpr_count 2
  .amdhsa_user_sgpr_kernarg_segment_ptr 1
  .amdhsa_system_sgpr_workgroup_id_x 1
.end_amdhsa_kernel
"""


def main():
    out = sys.argv[1] if len(sys.argv) > 1 else "standalone__mha_block_cached__near_ridge.s"
    opt = {}
    for kv in sys.argv[2:]:
        k, v = kv.split("=")
        opt[k] = int(v)
    txt = HEADER
    txt += "; @launch kernel=attn_kernel grid=(256,1,1) block=(256,1,1) lds=163840\n"
    txt += f"; @launch kernel=oproj_kernel grid=(256,1,1) block=(256,1,1) lds={8*WT}\n"
    txt += "; @launch kernel=reduce_kernel grid=(640,1,1) block=(256,1,1) lds=0\n"
    txt += '.amdgcn_target "amdgcn-amd-amdhsa--gfx950"\n.text\n'
    for name, fn in (("attn_kernel", gen_attn), ("oproj_kernel", gen_oproj), ("reduce_kernel", gen_reduce)):
        a = Asm()
        fn(a, opt)
        txt += f".globl {name}\n.p2align 8\n.type {name},@function\n" + a.text()
    txt += '.section .rodata,"a"\n'
    for name, v, acc in (("attn_kernel", 288, 256), ("oproj_kernel", 256, 256), ("reduce_kernel", 40, 40)):
        txt += ".p2align 6\n" + kd(name, v, acc)
    open(out, "w").write(txt)


if __name__ == "__main__":
    main()
```
